```python
import torch

def _softmax(x, axis=-1):
    return torch.softmax(x, dim=axis)
def _gelu(x):
    return torch.nn.functional.gelu(x, approximate="tanh")
def _silu(x):
    return torch.nn.functional.silu(x)
def _sigmoid(x):
    return torch.sigmoid(x)
def _layernorm(x, axis=-1, eps=1e-5):
    m = x.mean(dim=axis, keepdim=True)
    v = x.var(dim=axis, keepdim=True, unbiased=False)
    return (x - m) / torch.sqrt(v + eps)
def _scatter_add(tgt, idx, src, axis=0):
    return tgt.clone().index_add_(axis, idx, src)
def _segment_sum(src, seg, n):
    out = torch.zeros((n,) + src.shape[1:], dtype=src.dtype)
    return out.index_add_(0, seg, src)
def _pad(x, pw):
    flat = tuple(v for pair in reversed(pw) for v in pair)
    return torch.nn.functional.pad(x, flat)

kernel_name = 'standalone__cross_network_dcn_v2__recsys'

def setup_inputs():

    _w = (lambda a: (lambda t: t.to(torch.bfloat16) if t.is_floating_point() else t)(torch.as_tensor(a)))
    B, F, D, L = 16384, 26, 16, 3
    Din = min(F * D, 512)
    R = max(Din // 4, 2)
    sc = Din ** -0.5
    return {
        "x0": _w((lambda *s: torch.randn(*s, dtype=torch.bfloat16) * 0.05)(B, Din)),
        "U":  _w((lambda *s: torch.randn(*s, dtype=torch.bfloat16) * 1.6)(L, Din, R) * sc),
        "V":  _w((lambda *s: torch.randn(*s, dtype=torch.bfloat16) * 1.6)(L, R, Din) * sc),
        "bs": _w((lambda *s: torch.randn(*s, dtype=torch.bfloat16) * 0.05)(L, Din)),
    }

def reference(x0, U, V, bs):
    x = x0
    for l in range(U.shape[0]):
        h = torch.einsum('rd,bd->br', V[l], x)
        h = torch.einsum('dr,br->bd', U[l], h)
        x = x0 * (h + bs[l]) + x
    return x
```

```python
NAME = "standalone__cross_network_dcn_v2__recsys_kernel"
HEADER = """; Kernarg layout for this problem (56 bytes, ptrs only, base s[0:1]):
"""
def kernel_text(label, body):
    return f""".globl {label}
.p2align 8
.type {label},@function
{label}:
{body}
"""
def kd(label, vgpr=256, accum=256, sgpr=102):
    return f""".amdhsa_kernel {label}
  .amdhsa_next_free_vgpr {vgpr}
  .amdhsa_next_free_sgpr {sgpr}
  .amdhsa_accum_offset {accum}
  .amdhsa_group_segment_fixed_size 0
  .amdhsa_kernarg_size 56
  .amdhsa_user_sgpr_count 2
  .amdhsa_user_sgpr_kernarg_segment_ptr 1
  .amdhsa_system_sgpr_workgroup_id_x 1
.end_amdhsa_kernel
"""
def single(body, grid, block=256, lds=0, vgpr=256, accum=256):
    return (HEADER + f"; @launch grid=({grid},1,1) block=({block},1,1) lds={lds}\n"
            + '.amdgcn_target "amdgcn-amd-amdhsa--gfx950"\n.text\n'
            + kernel_text(NAME, body) + '.section .rodata,"a"\n.p2align 6\n' + kd(NAME, vgpr, accum))
```

```python
import sys
from asmlib import *

class Cfg:
    D = 10
    NR = 12
    PACKED = (2, 5, 8, 10)
    BAR_B = 30
    stamps = False
    order = "default"
    store_mod = ""
    x_mod = ""
    codepf = False
    DMA_GAP = 4
    verbose = False
    def __init__(self, **kw):
        for k, v in kw.items():
            assert hasattr(Cfg, k), k
            setattr(self, k, v)

LAYER = 86528
DSL = 13312
WINB = 5 * DSL
VREM = 10 * DSL
LDS_BYTES = VREM + 3 * 8192

S0 = 0
X0 = 104
HACC = 192
HF = 220
HR = 232
XF = 238
TMP = 246
vVA, vUA, vU64, vDV, vDU, vX, vVR, vSP = 248, 249, 250, 251, 252, 253, 254, 255
A_RING = 0
A_UR = 48
sX, sU, sV, sB, sO, sPF = 16, 20, 24, 28, 32, 52
sW, sW1056, sW1024, sOFF = 36, 37, 38, 39
sMLO = 40
sML = (42, 44, 46)
sWRAP = {16: 48, 32: 49, 48: 50}
sMASK = 51

def vr(b, n=4): return f"v[{b}:{b+n-1}]"
def ar(b, n=4): return f"a[{b}:{b+n-1}]"
def sr(b, n=4): return f"s[{b}:{b+n-1}]"

def generate(cfg):
    D, NR = cfg.D, cfg.NR
    xlo, xhi = {}, {}
    p = X0
    for s in range(13):
        if s in cfg.PACKED:
            xhi[s] = p; xlo[s] = None; p += 4
        else:
            xlo[s] = p; xhi[s] = p + 4; p += 8
    assert p <= HACC, p
    def Sreg(s, u): return S0 + 4 * (2 * s + u)

    groups = {}
    def vslot(m):
        if m < 5: return m
        if m < 7: return 8 + (m - 5)
        return (m - 7) % 5
    for m in range(20):
        sig = 2 * m
        l, s = divmod(sig, 13)
        for t in range(3):
            base = vslot(m) * DSL + 4224 * t
            groups[("V", m, t)] = dict(lds=[(base, base + 4224)], m0=("add", sW1056, base),
                                       soff=l * LAYER + 26624 * t + 64 * s, srd=sV, voff=(vSP if m == 6 else vDV))
    for t in range(64):
        pos = [(4 * t + w) % 65 for w in range(4)]
        rng = [(WINB + q * 1024, WINB + q * 1024 + 1024) for q in pos]
        if pos[3] == pos[0] + 3: m0 = ("add", sW1024, WINB + pos[0] * 1024)
        else: m0 = ("mov", sWRAP[t])
        groups[("U", t)] = dict(lds=rng, m0=m0, soff=4096 * t, srd=sU, voff=vDU)
    for l in range(3):
        for t in range(2):
            base = VREM + 8192 * l + 4096 * t
            groups[("R", l, t)] = dict(lds=[(base, base + 4096)], m0=("add", sW1024, base),
                                       soff=l * LAYER + 96 * 832 + 4096 * t, srd=sV, voff=vDU)

    M = []
    def g1(l, s, tile):
        first = (s == 0)
        acc = HACC + 4 * tile
        B = xhi[s] if l == 0 else XF + 4 * (s & 1)
        sig = 13 * l + s
        m, half = divmod(sig, 2)
        if tile < 6:
            j, u = divmod(tile, 2)
            sl = vslot(m)
            win = 1 if sl >= 5 else 0
            off = (sl - 5 * win) * DSL + 4224 * j + 256 * u + 512 * half
            rd = dict(op="ds_read_b128", addr=vVA, off=off, win=win, ring=True)
            needs = [("V", m, j)]
        else:
            rd = dict(op="ds_read_b128", addr=vVR, off=8192 * l + 64 * s, ring=True)
            needs = [("R", l, 0), ("R", l, 1)]
        M.append(dict(tag=("G1", l, s, tile), acc=acc, czero=first, B=B, rd=rd, needs=needs))
    def g2(l, s, u, j):
        acc = Sreg(s, u)
        sig = 13 * l + s
        base = (sig % 10) * 6656
        needs = [("U", t) for t in range(6656 * sig // 4096, (6656 * (sig + 1) - 1) // 4096 + 1)]
        if j < 3:
            rd = dict(op="ds_read_b128", addr=vUA, off=base + 208 * u + 64 * j, ring=True)
            M.append(dict(tag=("G2", l, s, u, j), acc=acc, czero=False, B=HF + 4 * j, rd=rd, needs=needs))
        else:
            g = A_UR + 6 * s
            rd = dict(op="ds_read_b64", addr=vU64, off=base + 208 * u, ring=False, dst=ar(g + 4 * u, 2))
            M.append(dict(tag=("G2", l, s, u, j), acc=acc, czero=False, B=(HR + 2 if u == 0 else HR),
                          rd=rd, A=ar(g + 2 * u), needs=needs))
    for s in range(13):
        for t in range(7): g1(0, s, t)
    for l in range(3):
        for j in range(4):
            for s in (0, 1):
                for u in (0, 1): g2(l, s, u, j)
        for s in range(2, 13):
            seq2 = [(u, j) for j in range(4) for u in (0, 1)]
            if l < 2 and s >= 3:
                for i, (u, j) in enumerate(seq2):
                    g2(l, s, u, j)
                    if i < 7: g1(l + 1, s - 3, i)
            else:
                for (u, j) in seq2: g2(l, s, u, j)
        if l < 2:
            for s in (10, 11, 12):
                for t in range(7): g1(l + 1, s, t)
    N = len(M)
    assert N == 585
    idx = {m["tag"]: k for k, m in enumerate(M)}
    rc = 0
    for m in M:
        if m["rd"]["ring"]:
            q = A_RING + 4 * (rc % NR); rc += 1
            m["rd"]["dst"] = ar(q); m["A"] = ar(q)

    LAT = 2
    V = []
    def vop(e, d, text, **kw): V.append(dict(e=e, d=d, text=text, **kw))
    g1_first = lambda l, s: min(idx[("G1", l, s, t)] for t in range(7))
    g1_last = lambda l, s: max(idx[("G1", l, s, t)] for t in range(7))
    g2_done = lambda l, s, u: idx[("G2", l, s, u, 3)]
    for s in range(13):
        if xlo[s] is None: continue
        dl = g2_done(0, s, 0) + LAT - 1
        for r in range(4): vop(g1_first(0, s), dl, f"v_lshlrev_b32 v{xlo[s]+r}, 16, v{xhi[s]+r}")
        for r in range(4): vop(g1_last(0, s), dl, f"v_and_b32 v{xhi[s]+r}, s{sMASK}, v{xhi[s]+r}")
    stores = []
    cbufs = [XF, XF + 4] + [HACC + 4 * i for i in range(7)]
    for l in range(3):
        prev_done = 0 if l == 0 else max(g2_done(l - 1, 12, 0), g2_done(l - 1, 12, 1))
        for j in range(3):
            c = idx[("G2", l, 0, 0, j)]
            for u in (0, 1):
                t = 2 * j + u
                e = max(idx[("G1", l, 12, t)] + LAT, prev_done)
                for h in (0, 1):
                    a = HACC + 4 * t + 2 * h
                    vop(e, c - 2, f"v_cvt_pk_bf16_f32 v{HF+4*j+2*u+h}, v{a}, v{a+1}", prio=0)
        c = idx[("G2", l, 0, 0, 3)]
        e = max(idx[("G1", l, 12, 6)] + LAT, prev_done)
        for h in (0, 1):
            a = HACC + 24 + 2 * h
            vop(e, c - 2, f"v_cvt_pk_bf16_f32 v{HR+2+h}, v{a}, v{a+1}", prio=0)
            vop(e, c - 2, f"v_cndmask_b32 v{HR+2+h}, 0, v{HR+2+h}, {sr(sMLO,2)}", prio=0)
        if l > 0:
            vop(prev_done, c - 2, f"v_cndmask_b32 v{HR}, 0, 1.0, {sr(sML[l],2)}", prio=0)
            vop(prev_done, c - 2, f"v_lshrrev_b32 v{HR+4}, 16, v{HR}", prio=0)
        for s in range(13):
            if l < 2:
                xf = XF + 4 * (s & 1)
                war = g1_last(l + 1, s - 2) if s >= 2 else (g1_last(l, 11 + s) if l > 0 else 0)
                if s < 2 and l > 0: war = g1_last(l, 12 if s == 0 else 11)
                dl = g1_first(l + 1, s) - 2
            else:
                xf = cbufs[s % len(cbufs)]
                war = idx[("G2", 2, 0, 0, 3)]
                dl = min(N - 1, g2_done(l, s, 1) + LAT + 7)
            e0 = max(g2_done(l, s, 0) + LAT, war)
            e1 = max(g2_done(l, s, 1) + LAT, war)
            for r in range(4):
                tmp = TMP + (r & 1)
                if xlo[s] is None:
                    vop(war, dl, f"v_lshlrev_b32 v{xf+r}, 16, v{xhi[s]+r}")
                    vop(e0, dl, f"v_mul_f32 v{xf+r}, v{xf+r}, v{Sreg(s,0)+r}")
                    vop(war, dl, f"v_and_b32 v{tmp}, s{sMASK}, v{xhi[s]+r}")
                    vop(e1, dl, f"v_mul_f32 v{tmp}, v{tmp}, v{Sreg(s,1)+r}")
                else:
                    vop(e0, dl, f"v_mul_f32 v{xf+r}, v{xlo[s]+r}, v{Sreg(s,0)+r}")
                    vop(e1, dl, f"v_mul_f32 v{tmp}, v{xhi[s]+r}, v{Sreg(s,1)+r}")
                last = (r == 3 and l == 2)
                vop(e1, dl, f"v_cvt_pk_bf16_f32 v{xf+r}, v{xf+r}, v{tmp}",
                    store=(f"buffer_store_dwordx4 {vr(xf)}, v{vX}, {sr(sO)}, 0 offen offset:{64*s}{cfg.store_mod}" if last else None))
    vreads = [(k, m["rd"]["win"]) for k, m in enumerate(M) if "win" in m["rd"]]
    special = []
    for (k0, w0), (k1, w1) in zip(vreads, vreads[1:]):
        if w0 != w1:
            op = "v_add_u32" if w1 else "v_subrev_u32"
            special.append(dict(e=k0 - D, d=k1 - D - 1, text=f"{op} v{vVA}, {WINB}, v{vVA}"))

    bars = []
    k = 14 - D
    while k < 91: bars.append(k); k += 14
    k = bars[-1] + cfg.BAR_B
    cstart = idx[("G2", 2, 0, 0, 0)]
    while k < N - 20:
        bars.append(k); k += cfg.BAR_B if k < cstart - 30 else 16
    first_use, last_use = {}, {}
    for k, m in enumerate(M):
        for g in m["needs"]:
            first_use.setdefault(g, k); last_use[g] = k
    order = sorted(groups, key=lambda g: first_use[g])
    overlap = lambda a, b: any(x[0] < y[1] and y[0] < x[1] for x in groups[a]["lds"] for y in groups[b]["lds"])
    for i, g in enumerate(order):
        preds = [h for h in order[:i] if overlap(g, h)]
        fa = max([last_use[h] for h in preds], default=None)
        if fa is None: groups[g]["rel"] = None
        else: groups[g]["rel"] = min(b for b in bars if b >= fa)
        cand = [b for b in bars if b <= first_use[g] - D]
        groups[g]["wait"] = max(cand) if cand else -1
    pro_groups = [g for g in order if groups[g]["rel"] is None]
    main_groups = [g for g in order if groups[g]["rel"] is not None]
    used = set(groups[g]["rel"] for g in main_groups) | set(groups[g]["wait"] for g in order)
    bars = [b for b in bars if b in used]

    slotV = [[] for _ in range(N + 1)]
    slotMem = [[] for _ in range(N + 1)]
    cap = [1 if k + D < N else 2 for k in range(N)] + [10**6]
    dma_slot = {}
    scal = [None] * N
    for b in bars: scal[b] = "s_barrier"; scal[b - 1] = "VMWAIT"
    pend = list(main_groups)
    k = 2
    while pend:
        ok = scal[k] is None and scal[k - 1] is None and scal[k - 2] is None
        rdy = [g for g in pend if groups[g]["rel"] + 2 <= k]
        if ok and rdy:
            g = min(rdy, key=lambda g: first_use[g])
            pend.remove(g)
            dma_slot[g] = k
            scal[k - 1] = ("m0", g); scal[k] = ("soff", g)
            slotMem[k].append(("dma", g)); cap[k] -= 1
            k += cfg.DMA_GAP
        else: k += 1
    if cfg.verbose:
        for g in main_groups: print(g, "rel", groups[g]["rel"], "slot", dma_slot[g], "wait", groups[g]["wait"], "first", first_use[g], "lat", groups[g]["wait"] - 1 - dma_slot[g])
    for sp in special:
        slotV[sp["e"]].append(sp["text"]); cap[sp["e"]] -= 1
    qs = [[v for v in V if v.get("prio", 1) == pr] for pr in (0, 1)]
    for q in qs:
        for i in range(len(q) - 2, -1, -1): q[i]["d"] = min(q[i]["d"], q[i + 1]["d"])
    ptr = [0, 0]
    over = 0; holes = 0
    for k in range(N + 1):
        for qi, q in enumerate(qs):
            while ptr[qi] < len(q):
                v = q[ptr[qi]]
                if v["e"] > k and k < N:
                    assert v["d"] > k or v["d"] >= N - 1, (v, k)
                    break
                force = v["d"] <= k
                if not force and cap[k] <= 0:
                    d = v["d"]
                    cnt = sum(1 for w in q[ptr[qi]:ptr[qi] + 60] if w["d"] <= d)
                    if cnt > 2 * (d - k): force = True
                    if cap[k] <= -2 and v["d"] > k: force = False
                if cap[k] > 0 or force:
                    slotV[k].append(v["text"]); cap[k] -= 1; ptr[qi] += 1
                    if v.get("store"):
                        kk = min(k + 1, N)
                        slotMem[kk].append(("store", v["store"])); cap[kk] -= 1
                else: break
        if k < N:
            if cap[k] < 0: over += -cap[k]
            if cap[k] > 0: holes += cap[k]
    info = dict(over=over, holes=holes, tail=len(slotV[N]), bars=bars)

    pro = ["PF"]
    xq = [("X", s) for s in range(13)]
    if cfg.order == "default":
        gl = list(pro_groups)
        def take(pred):
            for g in [g for g in gl if pred(g)]: pro.append(g); gl.remove(g)
        take(lambda g: g[0] == "R" and g[1] == 0)
        take(lambda g: g[0] == "V" and g[1] == 0)
        pro += xq[0:4]
        take(lambda g: g[0] == "V" and g[1] == 1)
        pro += xq[4:8]
        take(lambda g: g[0] == "V" and g[1] == 2)
        pro += xq[8:13]
        take(lambda g: g[0] == "V")
        take(lambda g: g[0] == "U" and g[1] < 4)
        pro += [("B", s) for s in range(13)]
        take(lambda g: True)
    elif cfg.order == "xfirst":
        pro += xq
        gl = list(pro_groups)
        pro += [g for g in gl if g[0] == "V" or (g[0] == "R" and g[1] == 0)]
        pro += [("B", s) for s in range(13)]
        pro += [g for g in gl if not (g[0] == "V" or (g[0] == "R" and g[1] == 0))]
    elif cfg.order == "xlast":
        gl = list(pro_groups)
        pro += [g for g in gl if g[0] == "V" or (g[0] == "R" and g[1] == 0)]
        pro += [("B", s) for s in range(13)]
        pro += [g for g in gl if not (g[0] == "V" or (g[0] == "R" and g[1] == 0))]
        pro += xq
    info["npro"] = len(pro)
    vm_order = list(pro)
    vm_pos = {g: i for i, g in enumerate(pro)}

    L = []
    A = L.append
    def stamp(i):
        if cfg.stamps: A(f"s_memtime s[{60+2*i}:{61+2*i}]")
    def emit_m0(g):
        m0 = groups[g]["m0"]
        return f"s_add_u32 m0, s{m0[1]}, {m0[2]}" if m0[0] == "add" else f"s_mov_b32 m0, s{m0[1]}"
    def emit_soff(g): return f"s_mov_b32 s{sOFF}, {groups[g]['soff']}"
    def emit_dma(g): return f"buffer_load_dwordx4 v{groups[g]['voff']}, {sr(groups[g]['srd'])}, s{sOFF} offen lds"

    stamp(0)
    A("s_cmp_ge_u32 s2, 256"); A("s_cbranch_scc1 L_end")
    A(f"s_load_dwordx2 {sr(sX,2)}, s[0:1], 0")
    A(f"s_load_dwordx2 {sr(sU,2)}, s[0:1], 8")
    A(f"s_load_dwordx2 {sr(sV,2)}, s[0:1], 16")
    A(f"s_load_dwordx2 {sr(sB,2)}, s[0:1], 24")
    A(f"s_load_dwordx2 {sr(sO,2)}, s[0:1], 32")
    if cfg.stamps: A("s_load_dwordx2 s[56:57], s[0:1], 48")
    A("v_lshrrev_b32 v6, 6, v0")
    A("v_and_b32 v1, 63, v0")
    A(f"v_readfirstlane_b32 s{sW}, v6")
    A("v_and_b32 v2, 15, v0")
    A("v_bfe_u32 v3, v0, 4, 2")
    A("v_bfe_u32 v4, v0, 2, 2")
    A("v_and_b32 v5, 3, v0")
    A(f"v_lshlrev_b32 v{vDU}, 4, v0")
    for b, n in ((sX, 13631488), (sU, 259584), (sV, 259584), (sB, 2496), (sO, 13631488), (sPF, 259584)):
        A(f"s_mov_b32 s{b+2}, {n}"); A(f"s_mov_b32 s{b+3}, 0x00020000")
    A(f"s_mul_i32 s{sW1056}, s{sW}, 1056")
    A(f"s_lshl_b32 s{sW1024}, s{sW}, 10")
    A("v_bfe_u32 v6, v0, 2, 3")
    A(f"v_mul_u32_u24 v{vDV}, 832, v6")
    A("v_bfe_u32 v7, v0, 5, 1")
    A(f"v_lshl_add_u32 v{vDV}, v7, 6, v{vDV}")
    A(f"v_lshl_add_u32 v{vDV}, v5, 4, v{vDV}")
    A(f"s_mul_i32 s3, s{sW}, 6656")
    A(f"v_add_u32 v{vDV}, s3, v{vDV}")
    A("s_lshl_b32 s3, s2, 6"); A(f"s_lshl_b32 s4, s{sW}, 4"); A("s_add_u32 s3, s3, s4")
    A("v_add_u32 v8, s3, v2")
    A(f"v_mul_u32_u24 v{vX}, 832, v8")
    A(f"v_lshl_add_u32 v{vX}, v3, 4, v{vX}")
    A("s_bfe_u32 s3, s2, 0x50003"); A("s_lshl_b32 s3, s3, 1"); A(f"s_and_b32 s4, s{sW}, 1"); A("s_add_u32 s3, s3, s4"); A("s_lshl_b32 s3, s3, 12")
    A("v_lshlrev_b32 v9, 6, v1"); A("v_add_u32 v9, s3, v9")
    A(f"v_mul_u32_u24 v{vSP}, {LAYER - 832}, v7")
    A(f"v_add_u32 v{vSP}, v{vSP}, v{vDV}")
    A("v_mul_u32_u24 v10, 832, v3"); A("v_lshl_add_u32 v10, v2, 2, v10")
    A(f"s_cmp_lt_u32 s{sW}, 2")
    A("s_waitcnt lgkmcnt(0)")
    stamp(1)
    A(f"s_cselect_b32 s{sPF}, s{sU}, s{sV}"); A(f"s_cselect_b32 s{sPF+1}, s{sU+1}, s{sV+1}")
    for g in pro:
        if g == "PF": A(f"buffer_load_dword v{TMP}, v9, {sr(sPF)}, 0 offen")
        elif g[0] == "X": A(f"buffer_load_dwordx4 {vr(xhi[g[1]])}, v{vX}, {sr(sX)}, 0 offen offset:{64*g[1]}{cfg.x_mod}")
        elif g[0] == "B": A(f"buffer_load_dword a{A_UR+6*g[1]+2}, v10, {sr(sB)}, 0 offen offset:{64*g[1]}")
        else:
            A(emit_m0(g)); A(emit_soff(g)); A(emit_dma(g))
    stamp(2)
    A(f"v_mul_u32_u24 v{vVA}, 1056, v4"); A(f"v_lshl_add_u32 v{vVA}, v5, 6, v{vVA}"); A(f"v_lshl_add_u32 v{vVA}, v3, 4, v{vVA}")
    A("v_mul_u32_u24 v6, 416, v2")
    A(f"v_add_u32 v6, {WINB}, v6")
    A(f"v_lshl_add_u32 v{vUA}, v3, 4, v6")
    A("v_and_b32 v7, 1, v3"); A(f"v_lshl_add_u32 v{vU64}, v7, 3, v6"); A(f"v_add_u32 v{vU64}, 192, v{vU64}")
    A("v_lshrrev_b32 v6, 1, v4"); A("v_xor_b32 v6, v6, v4"); A("v_and_b32 v6, 1, v6"); A("v_lshl_add_u32 v6, v6, 2, v5")
    A(f"v_mul_u32_u24 v{vVR}, 832, v6"); A(f"v_lshl_add_u32 v{vVR}, v3, 4, v{vVR}"); A(f"v_add_u32 v{vVR}, {VREM}, v{vVR}")
    A(f"s_mov_b32 s{sMLO}, -1"); A(f"s_mov_b32 s{sMLO+1}, 0")
    A(f"s_mov_b32 s{sML[0]}, 0xffff"); A(f"s_mov_b32 s{sML[0]+1}, 0")
    A(f"s_mov_b32 s{sML[1]}, 0xffff0000"); A(f"s_mov_b32 s{sML[1]+1}, 0")
    A(f"s_mov_b32 s{sML[2]}, 0"); A(f"s_mov_b32 s{sML[2]+1}, 0xffff")
    A(f"s_mov_b32 s{sMASK}, 0xffff0000")
    for t, sreg in sWRAP.items():
        p0 = (4 * t) % 65
        A(f"s_add_u32 s{sreg}, s{sW}, {p0}"); A(f"s_cmp_ge_u32 s{sreg}, 65"); A(f"s_cselect_b32 s3, 65, 0")
        A(f"s_sub_u32 s{sreg}, s{sreg}, s3"); A(f"s_lshl_b32 s{sreg}, s{sreg}, 10"); A(f"s_add_u32 s{sreg}, s{sreg}, {WINB}")
    for s in range(13): A(f"v_accvgpr_write_b32 a{A_UR+6*s+3}, 0")
    A(f"v_mov_b32 v{HR+1}, 0"); A(f"v_mov_b32 v{HR+5}, 0")
    A(f"v_cndmask_b32 v{HR}, 0, 1.0, {sr(sML[0],2)}"); A(f"v_lshrrev_b32 v{HR+4}, 16, v{HR}")
    for r in range(104): A(f"v_mov_b32 v{S0+r}, 1.0")
    vm_done = -1
    def vm_wait_for(items):
        nonlocal vm_done
        hi = max([vm_pos[g] for g in items], default=-1)
        if hi <= vm_done: return None
        vm_done = hi
        n = len(vm_order) - 1 - hi
        return min(n, 63) if n <= 63 else None
    n = vm_wait_for([g for g in order if groups[g]["wait"] == -1])
    A(f"s_waitcnt vmcnt({n})"); A("s_barrier")
    stamp(3)
    def emit_read(k):
        rd = M[k]["rd"]
        return f"{rd['op']} {rd['dst']}, v{rd['addr']} offset:{rd['off']}"
    for k in range(D): A(emit_read(k))
    lg_done = -1
    def mfma_vm_needs(k):
        t = M[k]["tag"]
        if t[0] == "G1" and t[1] == 0: return [("X", t[2])]
        if t[0] == "G2" and t[1] == 0 and t[4] == 3: return [("B", t[2])]
        return []
    def wait_instr(upto, issued, extra_vm=()):
        nonlocal lg_done
        upto = min(upto, N - 1)
        parts = []
        need = list(extra_vm)
        for kk in range(0, upto + 1) if upto < 300 else []: need += mfma_vm_needs(kk)
        n = vm_wait_for(need)
        if n is not None: parts.append(f"vmcnt({n})")
        if upto > lg_done:
            parts.append(f"lgkmcnt({issued - 1 - upto})"); lg_done = upto
        return ("s_waitcnt " + " ".join(parts)) if parts else None
    if cfg.stamps: A("s_waitcnt lgkmcnt(0)"); lg_done = D - 1
    def is_free(k): return scal[k] is None or scal[k] == "VMWAIT"
    def next_free(k):
        k += 1
        while k < N and not is_free(k): k += 1
        return k
    w = wait_instr(next_free(-1), D)
    if w: A(w)
    stamp(4)
    minlat = 10**9
    for k in range(N):
        m = M[k]
        C = "0" if m["czero"] else vr(m["acc"])
        A(f"v_mfma_f32_16x16x32_bf16 {vr(m['acc'])}, {m['A']}, {vr(m['B'])}, {C}")
        issued = min(k + D, N)
        sc = scal[k]
        if is_free(k):
            ex = []
            if sc == "VMWAIT":
                ex = [g for g in order if groups[g]["wait"] == k + 1]
                for g in ex:
                    if g in dma_slot: minlat = min(minlat, k - dma_slot[g])
            w = wait_instr(next_free(k), issued, ex)
            if w: A(w)
        elif sc == "s_barrier": A(sc)
        elif sc[0] == "m0": A(emit_m0(sc[1]))
        elif sc[0] == "soff": A(emit_soff(sc[1]))
        if k + D < N: A(emit_read(k + D))
        for kind, x in slotMem[k]:
            if kind == "dma":
                A(emit_dma(x)); vm_pos[x] = len(vm_order); vm_order.append(x)
            else:
                A(x); vm_order.append("st")
        for t in slotV[k]: A(t)
    info["minlat"] = minlat
    if slotV[N]:
        A("s_nop 7")
        for t in slotV[N]: A(t)
    for kind, x in slotMem[N]: A(x)
    if cfg.stamps:
        stamp(5)
        A("s_waitcnt vmcnt(0)")
        stamp(6)
        A("s_memrealtime s[74:75]")
        A("s_waitcnt lgkmcnt(0)")
        A("s_mov_b32 s58, 0x10000000"); A("s_mov_b32 s59, 0x00020000")
        A("s_lshl_b32 s3, s2, 2"); A(f"s_add_u32 s3, s3, s{sW}"); A("s_lshl_b32 s3, s3, 5"); A("s_add_u32 s3, s3, 0x400000")
        A("v_mov_b32 v1, s3")
        for i in range(1, 7):
            A(f"s_sub_u32 s4, s{60+2*i}, s60"); A("v_mov_b32 v2, s4")
            A(f"buffer_store_dword v2, v1, s[56:59], 0 offen offset:{4*(i-1)}")
        A("v_mov_b32 v2, s74"); A("buffer_store_dword v2, v1, s[56:59], 0 offen offset:24")
        A("v_mov_b32 v2, s60"); A("buffer_store_dword v2, v1, s[56:59], 0 offen offset:28")
    A("L_end:")
    A("s_endpgm")
    check_hazards(L)
    return single("\n".join("    " + x if not x.endswith(":") else x for x in L), 256, lds=LDS_BYTES, vgpr=512, accum=256), info

import re
def regs_of(tok):
    tok = tok.strip()
    m = re.fullmatch(r"([va])\[(\d+):(\d+)\]", tok)
    if m: return {(m.group(1), i) for i in range(int(m.group(2)), int(m.group(3)) + 1)}
    m = re.fullmatch(r"([va])(\d+)", tok)
    if m: return {(m.group(1), int(m.group(2)))}
    return set()
def check_hazards(L):
    ins = []
    for x in L:
        if x.endswith(":"): continue
        op, _, rest = x.partition(" ")
        toks = [t.split()[0] if t.split() else "" for t in rest.split(",")]
        ins.append((op, toks, x))
    for i, (op, toks, x) in enumerate(ins):
        if op.startswith("v_mfma"):
            dst = regs_of(toks[0]); t = 0; lastM = 0
            for j in range(i + 1, min(i + 12, len(ins))):
                o2, t2, x2 = ins[j]
                t += 4
                prev = ins[j - 1]
                if prev[0] == "s_nop": t += 4 * int(prev[1][0])
                if o2.startswith("v_mfma"):
                    t = max(t, lastM + 16); lastM = t
                    if dst & (regs_of(t2[1]) | regs_of(t2[2])) and t < 36: raise Exception(f"mfma->AB hazard {x} / {x2}")
                elif o2.startswith(("v_", "ds_", "buffer_")):
                    allr = set().union(*[regs_of(z) for z in t2])
                    if dst & allr and t < 36: raise Exception(f"mfma->valu hazard {x} / {x2} t={t}")
                if t >= 36: break
        elif op.startswith("v_"):
            dst = regs_of(toks[0])
            for j in range(i + 1, min(i + 3, len(ins))):
                o2, t2, x2 = ins[j]
                if o2.startswith("v_mfma") and dst & set().union(*[regs_of(z) for z in t2[1:]]): raise Exception(f"valu->mfma hazard {x} / {x2}")
                if o2 == "s_nop": break

if __name__ == "__main__":
    kw = {}
    out = sys.argv[1]
    for a in sys.argv[2:]:
        k, v = a.split("=", 1)
        kw[k] = eval(v)
    txt, info = generate(Cfg(**kw))
    open(out, "w").write(txt)
    print(info)
```

```python
import sys
from asmlib import *

class Cfg:
    D = 10
    NR = 12
    PACKED = (2, 5, 8, 10)
    BAR_B = 30
    stamps = False
    order = "default"
    store_mod = ""
    x_mod = ""
    codepf = False
    DMA_GAP = 4
    verbose = False
    spin = None
    spinwg = 100
    def __init__(self, **kw):
        for k, v in kw.items():
            assert hasattr(Cfg, k), k
            setattr(self, k, v)

LAYER = 86528
DSL = 13312
WINB = 5 * DSL
VREM = 10 * DSL
LDS_BYTES = VREM + 3 * 8192

S0 = 0
X0 = 104
HACC = 192
HF = 220
HR = 232
XF = 238
TMP = 246
vVA, vUA, vU64, vDV, vDU, vX, vVR, vSP = 248, 249, 250, 251, 252, 253, 254, 255
A_RING = 0
A_UR = 48
sX, sU, sV, sB, sO, sPF = 16, 20, 24, 28, 32, 52
sW, sW1056, sW1024, sOFF = 36, 37, 38, 39
sMLO = 40
sML = (42, 44, 46)
sWRAP = {16: 48, 32: 49, 48: 50}
sMASK = 51

def vr(b, n=4): return f"v[{b}:{b+n-1}]"
def ar(b, n=4): return f"a[{b}:{b+n-1}]"
def sr(b, n=4): return f"s[{b}:{b+n-1}]"

def generate(cfg):
    D, NR = cfg.D, cfg.NR
    xlo, xhi = {}, {}
    p = X0
    for s in range(13):
        if s in cfg.PACKED:
            xhi[s] = p; xlo[s] = None; p += 4
        else:
            xlo[s] = p; xhi[s] = p + 4; p += 8
    assert p <= HACC, p
    def Sreg(s, u): return S0 + 4 * (2 * s + u)

    groups = {}
    def vslot(m):
        if m < 5: return m
        if m < 7: return 8 + (m - 5)
        return (m - 7) % 5
    for m in range(20):
        sig = 2 * m
        l, s = divmod(sig, 13)
        for t in range(3):
            base = vslot(m) * DSL + 4224 * t
            groups[("V", m, t)] = dict(lds=[(base, base + 4224)], m0=("add", sW1056, base),
                                       soff=l * LAYER + 26624 * t + 64 * s, srd=sV, voff=(vSP if m == 6 else vDV))
    for t in range(64):
        pos = [(4 * t + w) % 65 for w in range(4)]
        rng = [(WINB + q * 1024, WINB + q * 1024 + 1024) for q in pos]
        if pos[3] == pos[0] + 3: m0 = ("add", sW1024, WINB + pos[0] * 1024)
        else: m0 = ("mov", sWRAP[t])
        groups[("U", t)] = dict(lds=rng, m0=m0, soff=4096 * t, srd=sU, voff=vDU)
    for l in range(3):
        for t in range(2):
            base = VREM + 8192 * l + 4096 * t
            groups[("R", l, t)] = dict(lds=[(base, base + 4096)], m0=("add", sW1024, base),
                                       soff=l * LAYER + 96 * 832 + 4096 * t, srd=sV, voff=vDU)

    M = []
    def g1(l, s, tile):
        first = (s == 0)
        acc = HACC + 4 * tile
        B = xhi[s] if l == 0 else XF + 4 * (s & 1)
        sig = 13 * l + s
        m, half = divmod(sig, 2)
        if tile < 6:
            j, u = divmod(tile, 2)
            sl = vslot(m)
            win = 1 if sl >= 5 else 0
            off = (sl - 5 * win) * DSL + 4224 * j + 256 * u + 512 * half
            rd = dict(op="ds_read_b128", addr=vVA, off=off, win=win, ring=True)
            needs = [("V", m, j)]
        else:
            rd = dict(op="ds_read_b128", addr=vVR, off=8192 * l + 64 * s, ring=True)
            needs = [("R", l, 0), ("R", l, 1)]
        M.append(dict(tag=("G1", l, s, tile), acc=acc, czero=first, B=B, rd=rd, needs=needs))
    def g2(l, s, u, j):
        acc = Sreg(s, u)
        sig = 13 * l + s
        base = (sig % 10) * 6656
        needs = [("U", t) for t in range(6656 * sig // 4096, (6656 * (sig + 1) - 1) // 4096 + 1)]
        if j < 3:
            rd = dict(op="ds_read_b128", addr=vUA, off=base + 208 * u + 64 * j, ring=True)
            M.append(dict(tag=("G2", l, s, u, j), acc=acc, czero=False, B=HF + 4 * j, rd=rd, needs=needs))
        else:
            g = A_UR + 6 * s
            rd = dict(op="ds_read_b64", addr=vU64, off=base + 208 * u, ring=False, dst=ar(g + 4 * u, 2))
            M.append(dict(tag=("G2", l, s, u, j), acc=acc, czero=False, B=(HR + 2 if u == 0 else HR),
                          rd=rd, A=ar(g + 2 * u), needs=needs))
    for s in range(13):
        for t in range(7): g1(0, s, t)
    for l in range(3):
        for j in range(4):
            for s in (0, 1):
                for u in (0, 1): g2(l, s, u, j)
        for s in range(2, 13):
            seq2 = [(u, j) for j in range(4) for u in (0, 1)]
            if l < 2 and s >= 3:
                for i, (u, j) in enumerate(seq2):
                    g2(l, s, u, j)
                    if i < 7: g1(l + 1, s - 3, i)
            else:
                for (u, j) in seq2: g2(l, s, u, j)
        if l < 2:
            for s in (10, 11, 12):
                for t in range(7): g1(l + 1, s, t)
    N = len(M)
    assert N == 585
    idx = {m["tag"]: k for k, m in enumerate(M)}
    rc = 0
    for m in M:
        if m["rd"]["ring"]:
            q = A_RING + 4 * (rc % NR); rc += 1
            m["rd"]["dst"] = ar(q); m["A"] = ar(q)

    LAT = 2
    V = []
    def vop(e, d, text, **kw): V.append(dict(e=e, d=d, text=text, **kw))
    g1_first = lambda l, s: min(idx[("G1", l, s, t)] for t in range(7))
    g1_last = lambda l, s: max(idx[("G1", l, s, t)] for t in range(7))
    g2_done = lambda l, s, u: idx[("G2", l, s, u, 3)]
    for s in range(13):
        if xlo[s] is None: continue
        dl = g2_done(0, s, 0) + LAT - 1
        for r in range(4): vop(g1_first(0, s), dl, f"v_lshlrev_b32 v{xlo[s]+r}, 16, v{xhi[s]+r}")
        for r in range(4): vop(g1_last(0, s), dl, f"v_and_b32 v{xhi[s]+r}, s{sMASK}, v{xhi[s]+r}")
    stores = []
    cbufs = [XF, XF + 4] + [HACC + 4 * i for i in range(7)]
    for l in range(3):
        prev_done = 0 if l == 0 else max(g2_done(l - 1, 12, 0), g2_done(l - 1, 12, 1))
        for j in range(3):
            c = idx[("G2", l, 0, 0, j)]
            for u in (0, 1):
                t = 2 * j + u
                e = max(idx[("G1", l, 12, t)] + LAT, prev_done)
                for h in (0, 1):
                    a = HACC + 4 * t + 2 * h
                    vop(e, c - 2, f"v_cvt_pk_bf16_f32 v{HF+4*j+2*u+h}, v{a}, v{a+1}", prio=0)
        c = idx[("G2", l, 0, 0, 3)]
        e = max(idx[("G1", l, 12, 6)] + LAT, prev_done)
        for h in (0, 1):
            a = HACC + 24 + 2 * h
            vop(e, c - 2, f"v_cvt_pk_bf16_f32 v{HR+2+h}, v{a}, v{a+1}", prio=0)
            vop(e, c - 2, f"v_cndmask_b32 v{HR+2+h}, 0, v{HR+2+h}, {sr(sMLO,2)}", prio=0)
        if l > 0:
            vop(prev_done, c - 2, f"v_cndmask_b32 v{HR}, 0, 1.0, {sr(sML[l],2)}", prio=0)
            vop(prev_done, c - 2, f"v_lshrrev_b32 v{HR+4}, 16, v{HR}", prio=0)
        for s in range(13):
            if l < 2:
                xf = XF + 4 * (s & 1)
                war = g1_last(l + 1, s - 2) if s >= 2 else (g1_last(l, 11 + s) if l > 0 else 0)
                if s < 2 and l > 0: war = g1_last(l, 12 if s == 0 else 11)
                dl = g1_first(l + 1, s) - 2
            else:
                xf = cbufs[s % len(cbufs)]
                war = idx[("G2", 2, 0, 0, 3)]
                dl = min(N - 1, g2_done(l, s, 1) + LAT + 7)
            e0 = max(g2_done(l, s, 0) + LAT, war)
            e1 = max(g2_done(l, s, 1) + LAT, war)
            for r in range(4):
                tmp = TMP + (r & 1)
                if xlo[s] is None:
                    vop(war, dl, f"v_lshlrev_b32 v{xf+r}, 16, v{xhi[s]+r}")
                    vop(e0, dl, f"v_mul_f32 v{xf+r}, v{xf+r}, v{Sreg(s,0)+r}")
                    vop(war, dl, f"v_and_b32 v{tmp}, s{sMASK}, v{xhi[s]+r}")
                    vop(e1, dl, f"v_mul_f32 v{tmp}, v{tmp}, v{Sreg(s,1)+r}")
                else:
                    vop(e0, dl, f"v_mul_f32 v{xf+r}, v{xlo[s]+r}, v{Sreg(s,0)+r}")
                    vop(e1, dl, f"v_mul_f32 v{tmp}, v{xhi[s]+r}, v{Sreg(s,1)+r}")
                last = (r == 3 and l == 2)
                vop(e1, dl, f"v_cvt_pk_bf16_f32 v{xf+r}, v{xf+r}, v{tmp}",
                    store=(f"buffer_store_dwordx4 {vr(xf)}, v{vX}, {sr(sO)}, 0 offen offset:{64*s}{cfg.store_mod}" if last else None))
    vreads = [(k, m["rd"]["win"]) for k, m in enumerate(M) if "win" in m["rd"]]
    special = []
    for (k0, w0), (k1, w1) in zip(vreads, vreads[1:]):
        if w0 != w1:
            op = "v_add_u32" if w1 else "v_subrev_u32"
            special.append(dict(e=k0 - D, d=k1 - D - 1, text=f"{op} v{vVA}, {WINB}, v{vVA}"))

    bars = []
    k = 14 - D
    while k < 91: bars.append(k); k += 14
    k = bars[-1] + cfg.BAR_B
    cstart = idx[("G2", 2, 0, 0, 0)]
    while k < N - 20:
        bars.append(k); k += cfg.BAR_B if k < cstart - 30 else 16
    first_use, last_use = {}, {}
    for k, m in enumerate(M):
        for g in m["needs"]:
            first_use.setdefault(g, k); last_use[g] = k
    order = sorted(groups, key=lambda g: first_use[g])
    overlap = lambda a, b: any(x[0] < y[1] and y[0] < x[1] for x in groups[a]["lds"] for y in groups[b]["lds"])
    for i, g in enumerate(order):
        preds = [h for h in order[:i] if overlap(g, h)]
        fa = max([last_use[h] for h in preds], default=None)
        if fa is None: groups[g]["rel"] = None
        else: groups[g]["rel"] = min(b for b in bars if b >= fa)
        cand = [b for b in bars if b <= first_use[g] - D]
        groups[g]["wait"] = max(cand) if cand else -1
    pro_groups = [g for g in order if groups[g]["rel"] is None]
    main_groups = [g for g in order if groups[g]["rel"] is not None]
    used = set(groups[g]["rel"] for g in main_groups) | set(groups[g]["wait"] for g in order)
    bars = [b for b in bars if b in used]

    slotV = [[] for _ in range(N + 1)]
    slotMem = [[] for _ in range(N + 1)]
    cap = [1 if k + D < N else 2 for k in range(N)] + [10**6]
    dma_slot = {}
    scal = [None] * N
    for b in bars: scal[b] = "s_barrier"; scal[b - 1] = "VMWAIT"
    pend = list(main_groups)
    k = 2
    while pend:
        ok = scal[k] is None and scal[k - 1] is None and scal[k - 2] is None
        rdy = [g for g in pend if groups[g]["rel"] + 2 <= k]
        if ok and rdy:
            g = min(rdy, key=lambda g: first_use[g])
            pend.remove(g)
            dma_slot[g] = k
            scal[k - 1] = ("m0", g); scal[k] = ("soff", g)
            slotMem[k].append(("dma", g)); cap[k] -= 1
            k += cfg.DMA_GAP
        else: k += 1
    if cfg.verbose:
        for g in main_groups: print(g, "rel", groups[g]["rel"], "slot", dma_slot[g], "wait", groups[g]["wait"], "first", first_use[g], "lat", groups[g]["wait"] - 1 - dma_slot[g])
    for sp in special:
        slotV[sp["e"]].append(sp["text"]); cap[sp["e"]] -= 1
    qs = [[v for v in V if v.get("prio", 1) == pr] for pr in (0, 1)]
    for q in qs:
        for i in range(len(q) - 2, -1, -1): q[i]["d"] = min(q[i]["d"], q[i + 1]["d"])
    ptr = [0, 0]
    over = 0; holes = 0
    for k in range(N + 1):
        for qi, q in enumerate(qs):
            while ptr[qi] < len(q):
                v = q[ptr[qi]]
                if v["e"] > k and k < N:
                    assert v["d"] > k or v["d"] >= N - 1, (v, k)
                    break
                force = v["d"] <= k
                if not force and cap[k] <= 0:
                    d = v["d"]
                    cnt = sum(1 for w in q[ptr[qi]:ptr[qi] + 60] if w["d"] <= d)
                    if cnt > 2 * (d - k): force = True
                    if cap[k] <= -2 and v["d"] > k: force = False
                if cap[k] > 0 or force:
                    slotV[k].append(v["text"]); cap[k] -= 1; ptr[qi] += 1
                    if v.get("store"):
                        kk = min(k + 1, N)
                        slotMem[kk].append(("store", v["store"])); cap[kk] -= 1
                else: break
        if k < N:
            if cap[k] < 0: over += -cap[k]
            if cap[k] > 0: holes += cap[k]
    info = dict(over=over, holes=holes, tail=len(slotV[N]), bars=bars)

    pro = ["PF"]
    xq = [("X", s) for s in range(13)]
    if cfg.order == "default":
        gl = list(pro_groups)
        def take(pred):
            for g in [g for g in gl if pred(g)]: pro.append(g); gl.remove(g)
        take(lambda g: g[0] == "R" and g[1] == 0)
        take(lambda g: g[0] == "V" and g[1] == 0)
        pro += xq[0:4]
        take(lambda g: g[0] == "V" and g[1] == 1)
        pro += xq[4:8]
        take(lambda g: g[0] == "V" and g[1] == 2)
        pro += xq[8:13]
        take(lambda g: g[0] == "V")
        take(lambda g: g[0] == "U" and g[1] < 4)
        pro += [("B", s) for s in range(13)]
        take(lambda g: True)
    elif cfg.order == "xfirst":
        pro += xq
        gl = list(pro_groups)
        pro += [g for g in gl if g[0] == "V" or (g[0] == "R" and g[1] == 0)]
        pro += [("B", s) for s in range(13)]
        pro += [g for g in gl if not (g[0] == "V" or (g[0] == "R" and g[1] == 0))]
    elif cfg.order == "xlast":
        gl = list(pro_groups)
        pro += [g for g in gl if g[0] == "V" or (g[0] == "R" and g[1] == 0)]
        pro += [("B", s) for s in range(13)]
        pro += [g for g in gl if not (g[0] == "V" or (g[0] == "R" and g[1] == 0))]
        pro += xq
    info["npro"] = len(pro)
    vm_order = list(pro)
    vm_pos = {g: i for i, g in enumerate(pro)}

    L = []
    A = L.append
    def stamp(i):
        if cfg.stamps or cfg.spin is not None: A(f"s_memtime s[{60+2*i}:{61+2*i}]")
    def emit_m0(g):
        m0 = groups[g]["m0"]
        return f"s_add_u32 m0, s{m0[1]}, {m0[2]}" if m0[0] == "add" else f"s_mov_b32 m0, s{m0[1]}"
    def emit_soff(g): return f"s_mov_b32 s{sOFF}, {groups[g]['soff']}"
    def emit_dma(g): return f"buffer_load_dwordx4 v{groups[g]['voff']}, {sr(groups[g]['srd'])}, s{sOFF} offen lds"

    stamp(0)
    A("s_cmp_ge_u32 s2, 256"); A("s_cbranch_scc1 L_end")
    A(f"s_load_dwordx2 {sr(sX,2)}, s[0:1], 0")
    A(f"s_load_dwordx2 {sr(sU,2)}, s[0:1], 8")
    A(f"s_load_dwordx2 {sr(sV,2)}, s[0:1], 16")
    A(f"s_load_dwordx2 {sr(sB,2)}, s[0:1], 24")
    A(f"s_load_dwordx2 {sr(sO,2)}, s[0:1], 32")
    if cfg.stamps: A("s_load_dwordx2 s[56:57], s[0:1], 48")
    A("v_lshrrev_b32 v6, 6, v0")
    A("v_and_b32 v1, 63, v0")
    A(f"v_readfirstlane_b32 s{sW}, v6")
    A("v_and_b32 v2, 15, v0")
    A("v_bfe_u32 v3, v0, 4, 2")
    A("v_bfe_u32 v4, v0, 2, 2")
    A("v_and_b32 v5, 3, v0")
    A(f"v_lshlrev_b32 v{vDU}, 4, v0")
    for b, n in ((sX, 13631488), (sU, 259584), (sV, 259584), (sB, 2496), (sO, 13631488), (sPF, 259584)):
        A(f"s_mov_b32 s{b+2}, {n}"); A(f"s_mov_b32 s{b+3}, 0x00020000")
    A(f"s_mul_i32 s{sW1056}, s{sW}, 1056")
    A(f"s_lshl_b32 s{sW1024}, s{sW}, 10")
    A("v_bfe_u32 v6, v0, 2, 3")
    A(f"v_mul_u32_u24 v{vDV}, 832, v6")
    A("v_bfe_u32 v7, v0, 5, 1")
    A(f"v_lshl_add_u32 v{vDV}, v7, 6, v{vDV}")
    A(f"v_lshl_add_u32 v{vDV}, v5, 4, v{vDV}")
    A(f"s_mul_i32 s3, s{sW}, 6656")
    A(f"v_add_u32 v{vDV}, s3, v{vDV}")
    A("s_lshl_b32 s3, s2, 6"); A(f"s_lshl_b32 s4, s{sW}, 4"); A("s_add_u32 s3, s3, s4")
    A("v_add_u32 v8, s3, v2")
    A(f"v_mul_u32_u24 v{vX}, 832, v8")
    A(f"v_lshl_add_u32 v{vX}, v3, 4, v{vX}")
    A("s_bfe_u32 s3, s2, 0x50003"); A("s_lshl_b32 s3, s3, 1"); A(f"s_and_b32 s4, s{sW}, 1"); A("s_add_u32 s3, s3, s4"); A("s_lshl_b32 s3, s3, 12")
    A("v_lshlrev_b32 v9, 6, v1"); A("v_add_u32 v9, s3, v9")
    A(f"v_mul_u32_u24 v{vSP}, {LAYER - 832}, v7")
    A(f"v_add_u32 v{vSP}, v{vSP}, v{vDV}")
    A("v_mul_u32_u24 v10, 832, v3"); A("v_lshl_add_u32 v10, v2, 2, v10")
    A(f"s_cmp_lt_u32 s{sW}, 2")
    A("s_waitcnt lgkmcnt(0)")
    stamp(1)
    A(f"s_cselect_b32 s{sPF}, s{sU}, s{sV}"); A(f"s_cselect_b32 s{sPF+1}, s{sU+1}, s{sV+1}")
    for g in pro:
        if g == "PF": A(f"buffer_load_dword v{TMP}, v9, {sr(sPF)}, 0 offen")
        elif g[0] == "X": A(f"buffer_load_dwordx4 {vr(xhi[g[1]])}, v{vX}, {sr(sX)}, 0 offen offset:{64*g[1]}{cfg.x_mod}")
        elif g[0] == "B": A(f"buffer_load_dword a{A_UR+6*g[1]+2}, v10, {sr(sB)}, 0 offen offset:{64*g[1]}")
        else:
            A(emit_m0(g)); A(emit_soff(g)); A(emit_dma(g))
    stamp(2)
    A(f"v_mul_u32_u24 v{vVA}, 1056, v4"); A(f"v_lshl_add_u32 v{vVA}, v5, 6, v{vVA}"); A(f"v_lshl_add_u32 v{vVA}, v3, 4, v{vVA}")
    A("v_mul_u32_u24 v6, 416, v2")
    A(f"v_add_u32 v6, {WINB}, v6")
    A(f"v_lshl_add_u32 v{vUA}, v3, 4, v6")
    A("v_and_b32 v7, 1, v3"); A(f"v_lshl_add_u32 v{vU64}, v7, 3, v6"); A(f"v_add_u32 v{vU64}, 192, v{vU64}")
    A("v_lshrrev_b32 v6, 1, v4"); A("v_xor_b32 v6, v6, v4"); A("v_and_b32 v6, 1, v6"); A("v_lshl_add_u32 v6, v6, 2, v5")
    A(f"v_mul_u32_u24 v{vVR}, 832, v6"); A(f"v_lshl_add_u32 v{vVR}, v3, 4, v{vVR}"); A(f"v_add_u32 v{vVR}, {VREM}, v{vVR}")
    A(f"s_mov_b32 s{sMLO}, -1"); A(f"s_mov_b32 s{sMLO+1}, 0")
    A(f"s_mov_b32 s{sML[0]}, 0xffff"); A(f"s_mov_b32 s{sML[0]+1}, 0")
    A(f"s_mov_b32 s{sML[1]}, 0xffff0000"); A(f"s_mov_b32 s{sML[1]+1}, 0")
    A(f"s_mov_b32 s{sML[2]}, 0"); A(f"s_mov_b32 s{sML[2]+1}, 0xffff")
    A(f"s_mov_b32 s{sMASK}, 0xffff0000")
    for t, sreg in sWRAP.items():
        p0 = (4 * t) % 65
        A(f"s_add_u32 s{sreg}, s{sW}, {p0}"); A(f"s_cmp_ge_u32 s{sreg}, 65"); A(f"s_cselect_b32 s3, 65, 0")
        A(f"s_sub_u32 s{sreg}, s{sreg}, s3"); A(f"s_lshl_b32 s{sreg}, s{sreg}, 10"); A(f"s_add_u32 s{sreg}, s{sreg}, {WINB}")
    for s in range(13): A(f"v_accvgpr_write_b32 a{A_UR+6*s+3}, 0")
    A(f"v_mov_b32 v{HR+1}, 0"); A(f"v_mov_b32 v{HR+5}, 0")
    A(f"v_cndmask_b32 v{HR}, 0, 1.0, {sr(sML[0],2)}"); A(f"v_lshrrev_b32 v{HR+4}, 16, v{HR}")
    for r in range(104): A(f"v_mov_b32 v{S0+r}, 1.0")
    vm_done = -1
    def vm_wait_for(items):
        nonlocal vm_done
        hi = max([vm_pos[g] for g in items], default=-1)
        if hi <= vm_done: return None
        vm_done = hi
        n = len(vm_order) - 1 - hi
        return min(n, 63) if n <= 63 else None
    n = vm_wait_for([g for g in order if groups[g]["wait"] == -1])
    A(f"s_waitcnt vmcnt({n})"); A("s_barrier")
    stamp(3)
    def emit_read(k):
        rd = M[k]["rd"]
        return f"{rd['op']} {rd['dst']}, v{rd['addr']} offset:{rd['off']}"
    for k in range(D): A(emit_read(k))
    lg_done = -1
    def mfma_vm_needs(k):
        t = M[k]["tag"]
        if t[0] == "G1" and t[1] == 0: return [("X", t[2])]
        if t[0] == "G2" and t[1] == 0 and t[4] == 3: return [("B", t[2])]
        return []
    def wait_instr(upto, issued, extra_vm=()):
        nonlocal lg_done
        upto = min(upto, N - 1)
        parts = []
        need = list(extra_vm)
        for kk in range(0, upto + 1) if upto < 300 else []: need += mfma_vm_needs(kk)
        n = vm_wait_for(need)
        if n is not None: parts.append(f"vmcnt({n})")
        if upto > lg_done:
            parts.append(f"lgkmcnt({issued - 1 - upto})"); lg_done = upto
        return ("s_waitcnt " + " ".join(parts)) if parts else None
    if cfg.stamps or cfg.spin is not None: A("s_waitcnt lgkmcnt(0)"); lg_done = D - 1
    def is_free(k): return scal[k] is None or scal[k] == "VMWAIT"
    def next_free(k):
        k += 1
        while k < N and not is_free(k): k += 1
        return k
    w = wait_instr(next_free(-1), D)
    if w: A(w)
    stamp(4)
    minlat = 10**9
    for k in range(N):
        m = M[k]
        C = "0" if m["czero"] else vr(m["acc"])
        A(f"v_mfma_f32_16x16x32_bf16 {vr(m['acc'])}, {m['A']}, {vr(m['B'])}, {C}")
        issued = min(k + D, N)
        sc = scal[k]
        if is_free(k):
            ex = []
            if sc == "VMWAIT":
                ex = [g for g in order if groups[g]["wait"] == k + 1]
                for g in ex:
                    if g in dma_slot: minlat = min(minlat, k - dma_slot[g])
            w = wait_instr(next_free(k), issued, ex)
            if w: A(w)
        elif sc == "s_barrier": A(sc)
        elif sc[0] == "m0": A(emit_m0(sc[1]))
        elif sc[0] == "soff": A(emit_soff(sc[1]))
        if k + D < N: A(emit_read(k + D))
        for kind, x in slotMem[k]:
            if kind == "dma":
                A(emit_dma(x)); vm_pos[x] = len(vm_order); vm_order.append(x)
            else:
                A(x); vm_order.append("st")
        for t in slotV[k]: A(t)
    info["minlat"] = minlat
    if slotV[N]:
        A("s_nop 7")
        for t in slotV[N]: A(t)
    for kind, x in slotMem[N]: A(x)
    if cfg.stamps:
        stamp(5)
        A("s_waitcnt vmcnt(0)")
        stamp(6)
        A("s_memrealtime s[74:75]")
        A("s_waitcnt lgkmcnt(0)")
        A("s_mov_b32 s58, 0x10000000"); A("s_mov_b32 s59, 0x00020000")
        A("s_lshl_b32 s3, s2, 2"); A(f"s_add_u32 s3, s3, s{sW}"); A("s_lshl_b32 s3, s3, 5"); A("s_add_u32 s3, s3, 0x400000")
        A("v_mov_b32 v1, s3")
        for i in range(1, 7):
            A(f"s_sub_u32 s4, s{60+2*i}, s60"); A("v_mov_b32 v2, s4")
            A(f"buffer_store_dword v2, v1, s[56:59], 0 offen offset:{4*(i-1)}")
        A("v_mov_b32 v2, s74"); A("buffer_store_dword v2, v1, s[56:59], 0 offen offset:24")
        A("v_mov_b32 v2, s60"); A("buffer_store_dword v2, v1, s[56:59], 0 offen offset:28")
    if cfg.spin is not None:
        stamp(5)
        A("s_waitcnt vmcnt(0)")
        stamp(6)
        A("s_waitcnt lgkmcnt(0)")
        A(f"s_cmp_lg_u32 s2, {cfg.spinwg}"); A("s_cbranch_scc1 L_end")
        A(f"s_sub_u32 s4, s{60+2*cfg.spin}, s60"); A("s_mul_i32 s4, s4, 10"); A("s_min_u32 s4, s4, 2000000")
        A("L_spin:")
        A("s_memtime s[76:77]"); A("s_waitcnt lgkmcnt(0)"); A("s_sub_u32 s5, s76, s72"); A("s_cmp_lt_u32 s5, s4"); A("s_cbranch_scc1 L_spin")
    A("L_end:")
    A("s_endpgm")
    check_hazards(L)
    return single("\n".join("    " + x if not x.endswith(":") else x for x in L), 256, lds=LDS_BYTES, vgpr=512, accum=256), info

import re
def regs_of(tok):
    tok = tok.strip()
    m = re.fullmatch(r"([va])\[(\d+):(\d+)\]", tok)
    if m: return {(m.group(1), i) for i in range(int(m.group(2)), int(m.group(3)) + 1)}
    m = re.fullmatch(r"([va])(\d+)", tok)
    if m: return {(m.group(1), int(m.group(2)))}
    return set()
def check_hazards(L):
    ins = []
    for x in L:
        if x.endswith(":"): continue
        op, _, rest = x.partition(" ")
        toks = [t.split()[0] if t.split() else "" for t in rest.split(",")]
        ins.append((op, toks, x))
    for i, (op, toks, x) in enumerate(ins):
        if op.startswith("v_mfma"):
            dst = regs_of(toks[0]); t = 0; lastM = 0
            for j in range(i + 1, min(i + 12, len(ins))):
                o2, t2, x2 = ins[j]
                t += 4
                prev = ins[j - 1]
                if prev[0] == "s_nop": t += 4 * int(prev[1][0])
                if o2.startswith("v_mfma"):
                    t = max(t, lastM + 16); lastM = t
                    if dst & (regs_of(t2[1]) | regs_of(t2[2])) and t < 36: raise Exception(f"mfma->AB hazard {x} / {x2}")
                elif o2.startswith(("v_", "ds_", "buffer_")):
                    allr = set().union(*[regs_of(z) for z in t2])
                    if dst & allr and t < 36: raise Exception(f"mfma->valu hazard {x} / {x2} t={t}")
                if t >= 36: break
        elif op.startswith("v_"):
            dst = regs_of(toks[0])
            for j in range(i + 1, min(i + 3, len(ins))):
                o2, t2, x2 = ins[j]
                if o2.startswith("v_mfma") and dst & set().union(*[regs_of(z) for z in t2[1:]]): raise Exception(f"valu->mfma hazard {x} / {x2}")
                if o2 == "s_nop": break

if __name__ == "__main__":
    kw = {}
    out = sys.argv[1]
    for a in sys.argv[2:]:
        k, v = a.split("=", 1)
        kw[k] = eval(v)
    txt, info = generate(Cfg(**kw))
    open(out, "w").write(txt)
    print(info)
```

```python
import sys
from asmlib import *

class Cfg:
    D = 10
    NR = 12
    PACKED = (2, 5, 8, 10)
    BAR_B = 30
    stamps = False
    order = "default"
    store_mod = ""
    x_mod = ""
    codepf = False
    DMA_GAP = 4
    verbose = False
    spin = None
    spinwg = 100
    spinfix = 0
    spinrt = False
    spinbase = 0
    def __init__(self, **kw):
        for k, v in kw.items():
            assert hasattr(Cfg, k), k
            setattr(self, k, v)

LAYER = 86528
DSL = 13312
WINB = 5 * DSL
VREM = 10 * DSL
LDS_BYTES = VREM + 3 * 8192

S0 = 0
X0 = 104
HACC = 192
HF = 220
HR = 232
XF = 238
TMP = 246
vVA, vUA, vU64, vDV, vDU, vX, vVR, vSP = 248, 249, 250, 251, 252, 253, 254, 255
A_RING = 0
A_UR = 48
sX, sU, sV, sB, sO, sPF = 16, 20, 24, 28, 32, 52
sW, sW1056, sW1024, sOFF = 36, 37, 38, 39
sMLO = 40
sML = (42, 44, 46)
sWRAP = {16: 48, 32: 49, 48: 50}
sMASK = 51

def vr(b, n=4): return f"v[{b}:{b+n-1}]"
def ar(b, n=4): return f"a[{b}:{b+n-1}]"
def sr(b, n=4): return f"s[{b}:{b+n-1}]"

def generate(cfg):
    D, NR = cfg.D, cfg.NR
    xlo, xhi = {}, {}
    p = X0
    for s in range(13):
        if s in cfg.PACKED:
            xhi[s] = p; xlo[s] = None; p += 4
        else:
            xlo[s] = p; xhi[s] = p + 4; p += 8
    assert p <= HACC, p
    def Sreg(s, u): return S0 + 4 * (2 * s + u)

    groups = {}
    def vslot(m):
        if m < 5: return m
        if m < 7: return 8 + (m - 5)
        return (m - 7) % 5
    for m in range(20):
        sig = 2 * m
        l, s = divmod(sig, 13)
        for t in range(3):
            base = vslot(m) * DSL + 4224 * t
            groups[("V", m, t)] = dict(lds=[(base, base + 4224)], m0=("add", sW1056, base),
                                       soff=l * LAYER + 26624 * t + 64 * s, srd=sV, voff=(vSP if m == 6 else vDV))
    for t in range(64):
        pos = [(4 * t + w) % 65 for w in range(4)]
        rng = [(WINB + q * 1024, WINB + q * 1024 + 1024) for q in pos]
        if pos[3] == pos[0] + 3: m0 = ("add", sW1024, WINB + pos[0] * 1024)
        else: m0 = ("mov", sWRAP[t])
        groups[("U", t)] = dict(lds=rng, m0=m0, soff=4096 * t, srd=sU, voff=vDU)
    for l in range(3):
        for t in range(2):
            base = VREM + 8192 * l + 4096 * t
            groups[("R", l, t)] = dict(lds=[(base, base + 4096)], m0=("add", sW1024, base),
                                       soff=l * LAYER + 96 * 832 + 4096 * t, srd=sV, voff=vDU)

    M = []
    def g1(l, s, tile):
        first = (s == 0)
        acc = HACC + 4 * tile
        B = xhi[s] if l == 0 else XF + 4 * (s & 1)
        sig = 13 * l + s
        m, half = divmod(sig, 2)
        if tile < 6:
            j, u = divmod(tile, 2)
            sl = vslot(m)
            win = 1 if sl >= 5 else 0
            off = (sl - 5 * win) * DSL + 4224 * j + 256 * u + 512 * half
            rd = dict(op="ds_read_b128", addr=vVA, off=off, win=win, ring=True)
            needs = [("V", m, j)]
        else:
            rd = dict(op="ds_read_b128", addr=vVR, off=8192 * l + 64 * s, ring=True)
            needs = [("R", l, 0), ("R", l, 1)]
        M.append(dict(tag=("G1", l, s, tile), acc=acc, czero=first, B=B, rd=rd, needs=needs))
    def g2(l, s, u, j):
        acc = Sreg(s, u)
        sig = 13 * l + s
        base = (sig % 10) * 6656
        needs = [("U", t) for t in range(6656 * sig // 4096, (6656 * (sig + 1) - 1) // 4096 + 1)]
        if j < 3:
            rd = dict(op="ds_read_b128", addr=vUA, off=base + 208 * u + 64 * j, ring=True)
            M.append(dict(tag=("G2", l, s, u, j), acc=acc, czero=False, B=HF + 4 * j, rd=rd, needs=needs))
        else:
            g = A_UR + 6 * s
            rd = dict(op="ds_read_b64", addr=vU64, off=base + 208 * u, ring=False, dst=ar(g + 4 * u, 2))
            M.append(dict(tag=("G2", l, s, u, j), acc=acc, czero=False, B=(HR + 2 if u == 0 else HR),
                          rd=rd, A=ar(g + 2 * u), needs=needs))
    for s in range(13):
        for t in range(7): g1(0, s, t)
    for l in range(3):
        for j in range(4):
            for s in (0, 1):
                for u in (0, 1): g2(l, s, u, j)
        for s in range(2, 13):
            seq2 = [(u, j) for j in range(4) for u in (0, 1)]
            if l < 2 and s >= 3:
                for i, (u, j) in enumerate(seq2):
                    g2(l, s, u, j)
                    if i < 7: g1(l + 1, s - 3, i)
            else:
                for (u, j) in seq2: g2(l, s, u, j)
        if l < 2:
            for s in (10, 11, 12):
                for t in range(7): g1(l + 1, s, t)
    N = len(M)
    assert N == 585
    idx = {m["tag"]: k for k, m in enumerate(M)}
    rc = 0
    for m in M:
        if m["rd"]["ring"]:
            q = A_RING + 4 * (rc % NR); rc += 1
            m["rd"]["dst"] = ar(q); m["A"] = ar(q)

    LAT = 2
    V = []
    def vop(e, d, text, **kw): V.append(dict(e=e, d=d, text=text, **kw))
    g1_first = lambda l, s: min(idx[("G1", l, s, t)] for t in range(7))
    g1_last = lambda l, s: max(idx[("G1", l, s, t)] for t in range(7))
    g2_done = lambda l, s, u: idx[("G2", l, s, u, 3)]
    for s in range(13):
        if xlo[s] is None: continue
        dl = g2_done(0, s, 0) + LAT - 1
        for r in range(4): vop(g1_first(0, s), dl, f"v_lshlrev_b32 v{xlo[s]+r}, 16, v{xhi[s]+r}")
        for r in range(4): vop(g1_last(0, s), dl, f"v_and_b32 v{xhi[s]+r}, s{sMASK}, v{xhi[s]+r}")
    stores = []
    cbufs = [XF, XF + 4] + [HACC + 4 * i for i in range(7)]
    for l in range(3):
        prev_done = 0 if l == 0 else max(g2_done(l - 1, 12, 0), g2_done(l - 1, 12, 1))
        for j in range(3):
            c = idx[("G2", l, 0, 0, j)]
            for u in (0, 1):
                t = 2 * j + u
                e = max(idx[("G1", l, 12, t)] + LAT, prev_done)
                for h in (0, 1):
                    a = HACC + 4 * t + 2 * h
                    vop(e, c - 2, f"v_cvt_pk_bf16_f32 v{HF+4*j+2*u+h}, v{a}, v{a+1}", prio=0)
        c = idx[("G2", l, 0, 0, 3)]
        e = max(idx[("G1", l, 12, 6)] + LAT, prev_done)
        for h in (0, 1):
            a = HACC + 24 + 2 * h
            vop(e, c - 2, f"v_cvt_pk_bf16_f32 v{HR+2+h}, v{a}, v{a+1}", prio=0)
            vop(e, c - 2, f"v_cndmask_b32 v{HR+2+h}, 0, v{HR+2+h}, {sr(sMLO,2)}", prio=0)
        if l > 0:
            vop(prev_done, c - 2, f"v_cndmask_b32 v{HR}, 0, 1.0, {sr(sML[l],2)}", prio=0)
            vop(prev_done, c - 2, f"v_lshrrev_b32 v{HR+4}, 16, v{HR}", prio=0)
        for s in range(13):
            if l < 2:
                xf = XF + 4 * (s & 1)
                war = g1_last(l + 1, s - 2) if s >= 2 else (g1_last(l, 11 + s) if l > 0 else 0)
                if s < 2 and l > 0: war = g1_last(l, 12 if s == 0 else 11)
                dl = g1_first(l + 1, s) - 2
            else:
                xf = cbufs[s % len(cbufs)]
                war = idx[("G2", 2, 0, 0, 3)]
                dl = min(N - 1, g2_done(l, s, 1) + LAT + 7)
            e0 = max(g2_done(l, s, 0) + LAT, war)
            e1 = max(g2_done(l, s, 1) + LAT, war)
            for r in range(4):
                tmp = TMP + (r & 1)
                if xlo[s] is None:
                    vop(war, dl, f"v_lshlrev_b32 v{xf+r}, 16, v{xhi[s]+r}")
                    vop(e0, dl, f"v_mul_f32 v{xf+r}, v{xf+r}, v{Sreg(s,0)+r}")
                    vop(war, dl, f"v_and_b32 v{tmp}, s{sMASK}, v{xhi[s]+r}")
                    vop(e1, dl, f"v_mul_f32 v{tmp}, v{tmp}, v{Sreg(s,1)+r}")
                else:
                    vop(e0, dl, f"v_mul_f32 v{xf+r}, v{xlo[s]+r}, v{Sreg(s,0)+r}")
                    vop(e1, dl, f"v_mul_f32 v{tmp}, v{xhi[s]+r}, v{Sreg(s,1)+r}")
                last = (r == 3 and l == 2)
                vop(e1, dl, f"v_cvt_pk_bf16_f32 v{xf+r}, v{xf+r}, v{tmp}",
                    store=(f"buffer_store_dwordx4 {vr(xf)}, v{vX}, {sr(sO)}, 0 offen offset:{64*s}{cfg.store_mod}" if last else None))
    vreads = [(k, m["rd"]["win"]) for k, m in enumerate(M) if "win" in m["rd"]]
    special = []
    for (k0, w0), (k1, w1) in zip(vreads, vreads[1:]):
        if w0 != w1:
            op = "v_add_u32" if w1 else "v_subrev_u32"
            special.append(dict(e=k0 - D, d=k1 - D - 1, text=f"{op} v{vVA}, {WINB}, v{vVA}"))

    bars = []
    k = 14 - D
    while k < 91: bars.append(k); k += 14
    k = bars[-1] + cfg.BAR_B
    cstart = idx[("G2", 2, 0, 0, 0)]
    while k < N - 20:
        bars.append(k); k += cfg.BAR_B if k < cstart - 30 else 16
    first_use, last_use = {}, {}
    for k, m in enumerate(M):
        for g in m["needs"]:
            first_use.setdefault(g, k); last_use[g] = k
    order = sorted(groups, key=lambda g: first_use[g])
    overlap = lambda a, b: any(x[0] < y[1] and y[0] < x[1] for x in groups[a]["lds"] for y in groups[b]["lds"])
    for i, g in enumerate(order):
        preds = [h for h in order[:i] if overlap(g, h)]
        fa = max([last_use[h] for h in preds], default=None)
        if fa is None: groups[g]["rel"] = None
        else: groups[g]["rel"] = min(b for b in bars if b >= fa)
        cand = [b for b in bars if b <= first_use[g] - D]
        groups[g]["wait"] = max(cand) if cand else -1
    pro_groups = [g for g in order if groups[g]["rel"] is None]
    main_groups = [g for g in order if groups[g]["rel"] is not None]
    used = set(groups[g]["rel"] for g in main_groups) | set(groups[g]["wait"] for g in order)
    bars = [b for b in bars if b in used]

    slotV = [[] for _ in range(N + 1)]
    slotMem = [[] for _ in range(N + 1)]
    cap = [1 if k + D < N else 2 for k in range(N)] + [10**6]
    dma_slot = {}
    scal = [None] * N
    for b in bars: scal[b] = "s_barrier"; scal[b - 1] = "VMWAIT"
    pend = list(main_groups)
    k = 2
    while pend:
        ok = scal[k] is None and scal[k - 1] is None and scal[k - 2] is None
        rdy = [g for g in pend if groups[g]["rel"] + 2 <= k]
        if ok and rdy:
            g = min(rdy, key=lambda g: first_use[g])
            pend.remove(g)
            dma_slot[g] = k
            scal[k - 1] = ("m0", g); scal[k] = ("soff", g)
            slotMem[k].append(("dma", g)); cap[k] -= 1
            k += cfg.DMA_GAP
        else: k += 1
    if cfg.verbose:
        for g in main_groups: print(g, "rel", groups[g]["rel"], "slot", dma_slot[g], "wait", groups[g]["wait"], "first", first_use[g], "lat", groups[g]["wait"] - 1 - dma_slot[g])
    for sp in special:
        slotV[sp["e"]].append(sp["text"]); cap[sp["e"]] -= 1
    qs = [[v for v in V if v.get("prio", 1) == pr] for pr in (0, 1)]
    for q in qs:
        for i in range(len(q) - 2, -1, -1): q[i]["d"] = min(q[i]["d"], q[i + 1]["d"])
    ptr = [0, 0]
    over = 0; holes = 0
    for k in range(N + 1):
        for qi, q in enumerate(qs):
            while ptr[qi] < len(q):
                v = q[ptr[qi]]
                if v["e"] > k and k < N:
                    assert v["d"] > k or v["d"] >= N - 1, (v, k)
                    break
                force = v["d"] <= k
                if not force and cap[k] <= 0:
                    d = v["d"]
                    cnt = sum(1 for w in q[ptr[qi]:ptr[qi] + 60] if w["d"] <= d)
                    if cnt > 2 * (d - k): force = True
                    if cap[k] <= -2 and v["d"] > k: force = False
                if cap[k] > 0 or force:
                    slotV[k].append(v["text"]); cap[k] -= 1; ptr[qi] += 1
                    if v.get("store"):
                        kk = min(k + 1, N)
                        slotMem[kk].append(("store", v["store"])); cap[kk] -= 1
                else: break
        if k < N:
            if cap[k] < 0: over += -cap[k]
            if cap[k] > 0: holes += cap[k]
    info = dict(over=over, holes=holes, tail=len(slotV[N]), bars=bars)

    pro = ["PF"]
    xq = [("X", s) for s in range(13)]
    if cfg.order == "default":
        gl = list(pro_groups)
        def take(pred):
            for g in [g for g in gl if pred(g)]: pro.append(g); gl.remove(g)
        take(lambda g: g[0] == "R" and g[1] == 0)
        take(lambda g: g[0] == "V" and g[1] == 0)
        pro += xq[0:4]
        take(lambda g: g[0] == "V" and g[1] == 1)
        pro += xq[4:8]
        take(lambda g: g[0] == "V" and g[1] == 2)
        pro += xq[8:13]
        take(lambda g: g[0] == "V")
        take(lambda g: g[0] == "U" and g[1] < 4)
        pro += [("B", s) for s in range(13)]
        take(lambda g: True)
    elif cfg.order == "xfirst":
        pro += xq
        gl = list(pro_groups)
        pro += [g for g in gl if g[0] == "V" or (g[0] == "R" and g[1] == 0)]
        pro += [("B", s) for s in range(13)]
        pro += [g for g in gl if not (g[0] == "V" or (g[0] == "R" and g[1] == 0))]
    elif cfg.order == "xlast":
        gl = list(pro_groups)
        pro += [g for g in gl if g[0] == "V" or (g[0] == "R" and g[1] == 0)]
        pro += [("B", s) for s in range(13)]
        pro += [g for g in gl if not (g[0] == "V" or (g[0] == "R" and g[1] == 0))]
        pro += xq
    info["npro"] = len(pro)
    vm_order = list(pro)
    vm_pos = {g: i for i, g in enumerate(pro)}

    L = []
    A = L.append
    def stamp(i):
        if cfg.stamps or cfg.spin is not None: A(f"{'s_memrealtime' if cfg.spinrt else 's_memtime'} s[{60+2*i}:{61+2*i}]")
    def emit_m0(g):
        m0 = groups[g]["m0"]
        return f"s_add_u32 m0, s{m0[1]}, {m0[2]}" if m0[0] == "add" else f"s_mov_b32 m0, s{m0[1]}"
    def emit_soff(g): return f"s_mov_b32 s{sOFF}, {groups[g]['soff']}"
    def emit_dma(g): return f"buffer_load_dwordx4 v{groups[g]['voff']}, {sr(groups[g]['srd'])}, s{sOFF} offen lds"

    stamp(0)
    A("s_cmp_ge_u32 s2, 256"); A("s_cbranch_scc1 L_end")
    A(f"s_load_dwordx2 {sr(sX,2)}, s[0:1], 0")
    A(f"s_load_dwordx2 {sr(sU,2)}, s[0:1], 8")
    A(f"s_load_dwordx2 {sr(sV,2)}, s[0:1], 16")
    A(f"s_load_dwordx2 {sr(sB,2)}, s[0:1], 24")
    A(f"s_load_dwordx2 {sr(sO,2)}, s[0:1], 32")
    if cfg.stamps: A("s_load_dwordx2 s[56:57], s[0:1], 48")
    A("v_lshrrev_b32 v6, 6, v0")
    A("v_and_b32 v1, 63, v0")
    A(f"v_readfirstlane_b32 s{sW}, v6")
    A("v_and_b32 v2, 15, v0")
    A("v_bfe_u32 v3, v0, 4, 2")
    A("v_bfe_u32 v4, v0, 2, 2")
    A("v_and_b32 v5, 3, v0")
    A(f"v_lshlrev_b32 v{vDU}, 4, v0")
    for b, n in ((sX, 13631488), (sU, 259584), (sV, 259584), (sB, 2496), (sO, 13631488), (sPF, 259584)):
        A(f"s_mov_b32 s{b+2}, {n}"); A(f"s_mov_b32 s{b+3}, 0x00020000")
    A(f"s_mul_i32 s{sW1056}, s{sW}, 1056")
    A(f"s_lshl_b32 s{sW1024}, s{sW}, 10")
    A("v_bfe_u32 v6, v0, 2, 3")
    A(f"v_mul_u32_u24 v{vDV}, 832, v6")
    A("v_bfe_u32 v7, v0, 5, 1")
    A(f"v_lshl_add_u32 v{vDV}, v7, 6, v{vDV}")
    A(f"v_lshl_add_u32 v{vDV}, v5, 4, v{vDV}")
    A(f"s_mul_i32 s3, s{sW}, 6656")
    A(f"v_add_u32 v{vDV}, s3, v{vDV}")
    A("s_lshl_b32 s3, s2, 6"); A(f"s_lshl_b32 s4, s{sW}, 4"); A("s_add_u32 s3, s3, s4")
    A("v_add_u32 v8, s3, v2")
    A(f"v_mul_u32_u24 v{vX}, 832, v8")
    A(f"v_lshl_add_u32 v{vX}, v3, 4, v{vX}")
    A("s_bfe_u32 s3, s2, 0x50003"); A("s_lshl_b32 s3, s3, 1"); A(f"s_and_b32 s4, s{sW}, 1"); A("s_add_u32 s3, s3, s4"); A("s_lshl_b32 s3, s3, 12")
    A("v_lshlrev_b32 v9, 6, v1"); A("v_add_u32 v9, s3, v9")
    A(f"v_mul_u32_u24 v{vSP}, {LAYER - 832}, v7")
    A(f"v_add_u32 v{vSP}, v{vSP}, v{vDV}")
    A("v_mul_u32_u24 v10, 832, v3"); A("v_lshl_add_u32 v10, v2, 2, v10")
    A(f"s_cmp_lt_u32 s{sW}, 2")
    A("s_waitcnt lgkmcnt(0)")
    stamp(1)
    A(f"s_cselect_b32 s{sPF}, s{sU}, s{sV}"); A(f"s_cselect_b32 s{sPF+1}, s{sU+1}, s{sV+1}")
    for g in pro:
        if g == "PF" and cfg.codepf:
            A("s_getpc_b64 s[80:81]"); A("s_and_b32 s80, s80, 0xffffff00"); A("s_and_b32 s81, s81, 0xffff"); A("s_mov_b32 s82, 18688"); A("s_mov_b32 s83, 0x00020000")
            A("v_lshlrev_b32 v11, 7, v0")
            A(f"buffer_load_dword v{TMP+1}, v11, s[80:83], 0 offen")
        if g == "PF": A(f"buffer_load_dword v{TMP}, v9, {sr(sPF)}, 0 offen")
        elif g[0] == "X": A(f"buffer_load_dwordx4 {vr(xhi[g[1]])}, v{vX}, {sr(sX)}, 0 offen offset:{64*g[1]}{cfg.x_mod}")
        elif g[0] == "B": A(f"buffer_load_dword a{A_UR+6*g[1]+2}, v10, {sr(sB)}, 0 offen offset:{64*g[1]}")
        else:
            A(emit_m0(g)); A(emit_soff(g)); A(emit_dma(g))
    stamp(2)
    A(f"v_mul_u32_u24 v{vVA}, 1056, v4"); A(f"v_lshl_add_u32 v{vVA}, v5, 6, v{vVA}"); A(f"v_lshl_add_u32 v{vVA}, v3, 4, v{vVA}")
    A("v_mul_u32_u24 v6, 416, v2")
    A(f"v_add_u32 v6, {WINB}, v6")
    A(f"v_lshl_add_u32 v{vUA}, v3, 4, v6")
    A("v_and_b32 v7, 1, v3"); A(f"v_lshl_add_u32 v{vU64}, v7, 3, v6"); A(f"v_add_u32 v{vU64}, 192, v{vU64}")
    A("v_lshrrev_b32 v6, 1, v4"); A("v_xor_b32 v6, v6, v4"); A("v_and_b32 v6, 1, v6"); A("v_lshl_add_u32 v6, v6, 2, v5")
    A(f"v_mul_u32_u24 v{vVR}, 832, v6"); A(f"v_lshl_add_u32 v{vVR}, v3, 4, v{vVR}"); A(f"v_add_u32 v{vVR}, {VREM}, v{vVR}")
    A(f"s_mov_b32 s{sMLO}, -1"); A(f"s_mov_b32 s{sMLO+1}, 0")
    A(f"s_mov_b32 s{sML[0]}, 0xffff"); A(f"s_mov_b32 s{sML[0]+1}, 0")
    A(f"s_mov_b32 s{sML[1]}, 0xffff0000"); A(f"s_mov_b32 s{sML[1]+1}, 0")
    A(f"s_mov_b32 s{sML[2]}, 0"); A(f"s_mov_b32 s{sML[2]+1}, 0xffff")
    A(f"s_mov_b32 s{sMASK}, 0xffff0000")
    for t, sreg in sWRAP.items():
        p0 = (4 * t) % 65
        A(f"s_add_u32 s{sreg}, s{sW}, {p0}"); A(f"s_cmp_ge_u32 s{sreg}, 65"); A(f"s_cselect_b32 s3, 65, 0")
        A(f"s_sub_u32 s{sreg}, s{sreg}, s3"); A(f"s_lshl_b32 s{sreg}, s{sreg}, 10"); A(f"s_add_u32 s{sreg}, s{sreg}, {WINB}")
    for s in range(13): A(f"v_accvgpr_write_b32 a{A_UR+6*s+3}, 0")
    A(f"v_mov_b32 v{HR+1}, 0"); A(f"v_mov_b32 v{HR+5}, 0")
    A(f"v_cndmask_b32 v{HR}, 0, 1.0, {sr(sML[0],2)}"); A(f"v_lshrrev_b32 v{HR+4}, 16, v{HR}")
    for r in range(104): A(f"v_mov_b32 v{S0+r}, 1.0")
    vm_done = -1
    def vm_wait_for(items):
        nonlocal vm_done
        hi = max([vm_pos[g] for g in items], default=-1)
        if hi <= vm_done: return None
        vm_done = hi
        n = len(vm_order) - 1 - hi
        return min(n, 63) if n <= 63 else None
    n = vm_wait_for([g for g in order if groups[g]["wait"] == -1])
    A(f"s_waitcnt vmcnt({n})"); A("s_barrier")
    stamp(3)
    def emit_read(k):
        rd = M[k]["rd"]
        return f"{rd['op']} {rd['dst']}, v{rd['addr']} offset:{rd['off']}"
    for k in range(D): A(emit_read(k))
    lg_done = -1
    def mfma_vm_needs(k):
        t = M[k]["tag"]
        if t[0] == "G1" and t[1] == 0: return [("X", t[2])]
        if t[0] == "G2" and t[1] == 0 and t[4] == 3: return [("B", t[2])]
        return []
    def wait_instr(upto, issued, extra_vm=()):
        nonlocal lg_done
        upto = min(upto, N - 1)
        parts = []
        need = list(extra_vm)
        for kk in range(0, upto + 1) if upto < 300 else []: need += mfma_vm_needs(kk)
        n = vm_wait_for(need)
        if n is not None: parts.append(f"vmcnt({n})")
        if upto > lg_done:
            parts.append(f"lgkmcnt({issued - 1 - upto})"); lg_done = upto
        return ("s_waitcnt " + " ".join(parts)) if parts else None
    if cfg.stamps or cfg.spin is not None: A("s_waitcnt lgkmcnt(0)"); lg_done = D - 1
    def is_free(k): return scal[k] is None or scal[k] == "VMWAIT"
    def next_free(k):
        k += 1
        while k < N and not is_free(k): k += 1
        return k
    w = wait_instr(next_free(-1), D)
    if w: A(w)
    stamp(4)
    minlat = 10**9
    for k in range(N):
        m = M[k]
        C = "0" if m["czero"] else vr(m["acc"])
        A(f"v_mfma_f32_16x16x32_bf16 {vr(m['acc'])}, {m['A']}, {vr(m['B'])}, {C}")
        issued = min(k + D, N)
        sc = scal[k]
        if is_free(k):
            ex = []
            if sc == "VMWAIT":
                ex = [g for g in order if groups[g]["wait"] == k + 1]
                for g in ex:
                    if g in dma_slot: minlat = min(minlat, k - dma_slot[g])
            w = wait_instr(next_free(k), issued, ex)
            if w: A(w)
        elif sc == "s_barrier": A(sc)
        elif sc[0] == "m0": A(emit_m0(sc[1]))
        elif sc[0] == "soff": A(emit_soff(sc[1]))
        if k + D < N: A(emit_read(k + D))
        for kind, x in slotMem[k]:
            if kind == "dma":
                A(emit_dma(x)); vm_pos[x] = len(vm_order); vm_order.append(x)
            else:
                A(x); vm_order.append("st")
        for t in slotV[k]: A(t)
    info["minlat"] = minlat
    if slotV[N]:
        A("s_nop 7")
        for t in slotV[N]: A(t)
    for kind, x in slotMem[N]: A(x)
    if cfg.stamps:
        stamp(5)
        A("s_waitcnt vmcnt(0)")
        stamp(6)
        A("s_memrealtime s[74:75]")
        A("s_waitcnt lgkmcnt(0)")
        A("s_mov_b32 s58, 0x10000000"); A("s_mov_b32 s59, 0x00020000")
        A("s_lshl_b32 s3, s2, 2"); A(f"s_add_u32 s3, s3, s{sW}"); A("s_lshl_b32 s3, s3, 5"); A("s_add_u32 s3, s3, 0x400000")
        A("v_mov_b32 v1, s3")
        for i in range(1, 7):
            A(f"s_sub_u32 s4, s{60+2*i}, s60"); A("v_mov_b32 v2, s4")
            A(f"buffer_store_dword v2, v1, s[56:59], 0 offen offset:{4*(i-1)}")
        A("v_mov_b32 v2, s74"); A("buffer_store_dword v2, v1, s[56:59], 0 offen offset:24")
        A("v_mov_b32 v2, s60"); A("buffer_store_dword v2, v1, s[56:59], 0 offen offset:28")
    if cfg.spin is not None:
        stamp(5)
        A("s_waitcnt vmcnt(0)")
        stamp(6)
        A("s_waitcnt lgkmcnt(0)")
        A(f"s_cmp_lg_u32 s2, {cfg.spinwg}"); A("s_cbranch_scc1 L_end")
        A(f"s_sub_u32 s4, s{60+2*cfg.spin}, s{60+2*cfg.spinbase}"); A("s_mul_i32 s4, s4, 10"); A(f"s_add_u32 s4, s4, {cfg.spinfix}"); A(f"s_min_u32 s4, s4, {100000 if cfg.spinrt else 2000000}")
        A("L_spin:")
        A(f"{'s_memrealtime' if cfg.spinrt else 's_memtime'} s[76:77]"); A("s_waitcnt lgkmcnt(0)"); A(f"s_sub_u32 s5, s76, s{60 if cfg.spinfix else 72}"); A("s_cmp_lt_u32 s5, s4"); A("s_cbranch_scc1 L_spin")
    A("L_end:")
    A("s_endpgm")
    check_hazards(L)
    return single("\n".join("    " + x if not x.endswith(":") else x for x in L), 256, lds=LDS_BYTES, vgpr=512, accum=256), info

import re
def regs_of(tok):
    tok = tok.strip()
    m = re.fullmatch(r"([va])\[(\d+):(\d+)\]", tok)
    if m: return {(m.group(1), i) for i in range(int(m.group(2)), int(m.group(3)) + 1)}
    m = re.fullmatch(r"([va])(\d+)", tok)
    if m: return {(m.group(1), int(m.group(2)))}
    return set()
def check_hazards(L):
    ins = []
    for x in L:
        if x.endswith(":"): continue
        op, _, rest = x.partition(" ")
        toks = [t.split()[0] if t.split() else "" for t in rest.split(",")]
        ins.append((op, toks, x))
    for i, (op, toks, x) in enumerate(ins):
        if op.startswith("v_mfma"):
            dst = regs_of(toks[0]); t = 0; lastM = 0
            for j in range(i + 1, min(i + 12, len(ins))):
                o2, t2, x2 = ins[j]
                t += 4
                prev = ins[j - 1]
                if prev[0] == "s_nop": t += 4 * int(prev[1][0])
                if o2.startswith("v_mfma"):
                    t = max(t, lastM + 16); lastM = t
                    if dst & (regs_of(t2[1]) | regs_of(t2[2])) and t < 36: raise Exception(f"mfma->AB hazard {x} / {x2}")
                elif o2.startswith(("v_", "ds_", "buffer_")):
                    allr = set().union(*[regs_of(z) for z in t2])
                    if dst & allr and t < 36: raise Exception(f"mfma->valu hazard {x} / {x2} t={t}")
                if t >= 36: break
        elif op.startswith("v_"):
            dst = regs_of(toks[0])
            for j in range(i + 1, min(i + 3, len(ins))):
                o2, t2, x2 = ins[j]
                if o2.startswith("v_mfma") and dst & set().union(*[regs_of(z) for z in t2[1:]]): raise Exception(f"valu->mfma hazard {x} / {x2}")
                if o2 == "s_nop": break

if __name__ == "__main__":
    kw = {}
    out = sys.argv[1]
    for a in sys.argv[2:]:
        k, v = a.split("=", 1)
        kw[k] = eval(v)
    txt, info = generate(Cfg(**kw))
    open(out, "w").write(txt)
    print(info)
```

```python
import sys
from asmlib import *

class Cfg:
    D = 10
    NR = 12
    PACKED = (2, 5, 8, 10)
    BAR_B = 30
    stamps = False
    order = "default"
    store_mod = ""
    x_mod = ""
    codepf = False
    DMA_GAP = 4
    verbose = False
    spin = None
    spinwg = 100
    xwait = False
    nopf = False
    spinfix = 0
    spinrt = False
    spinbase = 0
    def __init__(self, **kw):
        for k, v in kw.items():
            assert hasattr(Cfg, k), k
            setattr(self, k, v)

LAYER = 86528
DSL = 13312
WINB = 5 * DSL
VREM = 10 * DSL
LDS_BYTES = VREM + 3 * 8192

S0 = 0
X0 = 104
HACC = 192
HF = 220
HR = 232
XF = 238
TMP = 246
vVA, vUA, vU64, vDV, vDU, vX, vVR, vSP = 248, 249, 250, 251, 252, 253, 254, 255
A_RING = 0
A_UR = 48
sX, sU, sV, sB, sO, sPF = 16, 20, 24, 28, 32, 52
sW, sW1056, sW1024, sOFF = 36, 37, 38, 39
sMLO = 40
sML = (42, 44, 46)
sWRAP = {16: 48, 32: 49, 48: 50}
sMASK = 51

def vr(b, n=4): return f"v[{b}:{b+n-1}]"
def ar(b, n=4): return f"a[{b}:{b+n-1}]"
def sr(b, n=4): return f"s[{b}:{b+n-1}]"

def generate(cfg):
    D, NR = cfg.D, cfg.NR
    xlo, xhi = {}, {}
    p = X0
    for s in range(13):
        if s in cfg.PACKED:
            xhi[s] = p; xlo[s] = None; p += 4
        else:
            xlo[s] = p; xhi[s] = p + 4; p += 8
    assert p <= HACC, p
    def Sreg(s, u): return S0 + 4 * (2 * s + u)

    groups = {}
    def vslot(m):
        if m < 5: return m
        if m < 7: return 8 + (m - 5)
        return (m - 7) % 5
    for m in range(20):
        sig = 2 * m
        l, s = divmod(sig, 13)
        for t in range(3):
            base = vslot(m) * DSL + 4224 * t
            groups[("V", m, t)] = dict(lds=[(base, base + 4224)], m0=("add", sW1056, base),
                                       soff=l * LAYER + 26624 * t + 64 * s, srd=sV, voff=(vSP if m == 6 else vDV))
    for t in range(64):
        pos = [(4 * t + w) % 65 for w in range(4)]
        rng = [(WINB + q * 1024, WINB + q * 1024 + 1024) for q in pos]
        if pos[3] == pos[0] + 3: m0 = ("add", sW1024, WINB + pos[0] * 1024)
        else: m0 = ("mov", sWRAP[t])
        groups[("U", t)] = dict(lds=rng, m0=m0, soff=4096 * t, srd=sU, voff=vDU)
    for l in range(3):
        for t in range(2):
            base = VREM + 8192 * l + 4096 * t
            groups[("R", l, t)] = dict(lds=[(base, base + 4096)], m0=("add", sW1024, base),
                                       soff=l * LAYER + 96 * 832 + 4096 * t, srd=sV, voff=vDU)

    M = []
    def g1(l, s, tile):
        first = (s == 0)
        acc = HACC + 4 * tile
        B = xhi[s] if l == 0 else XF + 4 * (s & 1)
        sig = 13 * l + s
        m, half = divmod(sig, 2)
        if tile < 6:
            j, u = divmod(tile, 2)
            sl = vslot(m)
            win = 1 if sl >= 5 else 0
            off = (sl - 5 * win) * DSL + 4224 * j + 256 * u + 512 * half
            rd = dict(op="ds_read_b128", addr=vVA, off=off, win=win, ring=True)
            needs = [("V", m, j)]
        else:
            rd = dict(op="ds_read_b128", addr=vVR, off=8192 * l + 64 * s, ring=True)
            needs = [("R", l, 0), ("R", l, 1)]
        M.append(dict(tag=("G1", l, s, tile), acc=acc, czero=first, B=B, rd=rd, needs=needs))
    def g2(l, s, u, j):
        acc = Sreg(s, u)
        sig = 13 * l + s
        base = (sig % 10) * 6656
        needs = [("U", t) for t in range(6656 * sig // 4096, (6656 * (sig + 1) - 1) // 4096 + 1)]
        if j < 3:
            rd = dict(op="ds_read_b128", addr=vUA, off=base + 208 * u + 64 * j, ring=True)
            M.append(dict(tag=("G2", l, s, u, j), acc=acc, czero=False, B=HF + 4 * j, rd=rd, needs=needs))
        else:
            g = A_UR + 6 * s
            rd = dict(op="ds_read_b64", addr=vU64, off=base + 208 * u, ring=False, dst=ar(g + 4 * u, 2))
            M.append(dict(tag=("G2", l, s, u, j), acc=acc, czero=False, B=(HR + 2 if u == 0 else HR),
                          rd=rd, A=ar(g + 2 * u), needs=needs))
    for s in range(13):
        for t in range(7): g1(0, s, t)
    for l in range(3):
        for j in range(4):
            for s in (0, 1):
                for u in (0, 1): g2(l, s, u, j)
        for s in range(2, 13):
            seq2 = [(u, j) for j in range(4) for u in (0, 1)]
            if l < 2 and s >= 3:
                for i, (u, j) in enumerate(seq2):
                    g2(l, s, u, j)
                    if i < 7: g1(l + 1, s - 3, i)
            else:
                for (u, j) in seq2: g2(l, s, u, j)
        if l < 2:
            for s in (10, 11, 12):
                for t in range(7): g1(l + 1, s, t)
    N = len(M)
    assert N == 585
    idx = {m["tag"]: k for k, m in enumerate(M)}
    rc = 0
    for m in M:
        if m["rd"]["ring"]:
            q = A_RING + 4 * (rc % NR); rc += 1
            m["rd"]["dst"] = ar(q); m["A"] = ar(q)

    LAT = 2
    V = []
    def vop(e, d, text, **kw): V.append(dict(e=e, d=d, text=text, **kw))
    g1_first = lambda l, s: min(idx[("G1", l, s, t)] for t in range(7))
    g1_last = lambda l, s: max(idx[("G1", l, s, t)] for t in range(7))
    g2_done = lambda l, s, u: idx[("G2", l, s, u, 3)]
    for s in range(13):
        if xlo[s] is None: continue
        dl = g2_done(0, s, 0) + LAT - 1
        for r in range(4): vop(g1_first(0, s), dl, f"v_lshlrev_b32 v{xlo[s]+r}, 16, v{xhi[s]+r}")
        for r in range(4): vop(g1_last(0, s), dl, f"v_and_b32 v{xhi[s]+r}, s{sMASK}, v{xhi[s]+r}")
    stores = []
    cbufs = [XF, XF + 4] + [HACC + 4 * i for i in range(7)]
    for l in range(3):
        prev_done = 0 if l == 0 else max(g2_done(l - 1, 12, 0), g2_done(l - 1, 12, 1))
        for j in range(3):
            c = idx[("G2", l, 0, 0, j)]
            for u in (0, 1):
                t = 2 * j + u
                e = max(idx[("G1", l, 12, t)] + LAT, prev_done)
                for h in (0, 1):
                    a = HACC + 4 * t + 2 * h
                    vop(e, c - 2, f"v_cvt_pk_bf16_f32 v{HF+4*j+2*u+h}, v{a}, v{a+1}", prio=0)
        c = idx[("G2", l, 0, 0, 3)]
        e = max(idx[("G1", l, 12, 6)] + LAT, prev_done)
        for h in (0, 1):
            a = HACC + 24 + 2 * h
            vop(e, c - 2, f"v_cvt_pk_bf16_f32 v{HR+2+h}, v{a}, v{a+1}", prio=0)
            vop(e, c - 2, f"v_cndmask_b32 v{HR+2+h}, 0, v{HR+2+h}, {sr(sMLO,2)}", prio=0)
        if l > 0:
            vop(prev_done, c - 2, f"v_cndmask_b32 v{HR}, 0, 1.0, {sr(sML[l],2)}", prio=0)
            vop(prev_done, c - 2, f"v_lshrrev_b32 v{HR+4}, 16, v{HR}", prio=0)
        for s in range(13):
            if l < 2:
                xf = XF + 4 * (s & 1)
                war = g1_last(l + 1, s - 2) if s >= 2 else (g1_last(l, 11 + s) if l > 0 else 0)
                if s < 2 and l > 0: war = g1_last(l, 12 if s == 0 else 11)
                dl = g1_first(l + 1, s) - 2
            else:
                xf = cbufs[s % len(cbufs)]
                war = idx[("G2", 2, 0, 0, 3)]
                dl = min(N - 1, g2_done(l, s, 1) + LAT + 7)
            e0 = max(g2_done(l, s, 0) + LAT, war)
            e1 = max(g2_done(l, s, 1) + LAT, war)
            for r in range(4):
                tmp = TMP + (r & 1)
                if xlo[s] is None:
                    vop(war, dl, f"v_lshlrev_b32 v{xf+r}, 16, v{xhi[s]+r}")
                    vop(e0, dl, f"v_mul_f32 v{xf+r}, v{xf+r}, v{Sreg(s,0)+r}")
                    vop(war, dl, f"v_and_b32 v{tmp}, s{sMASK}, v{xhi[s]+r}")
                    vop(e1, dl, f"v_mul_f32 v{tmp}, v{tmp}, v{Sreg(s,1)+r}")
                else:
                    vop(e0, dl, f"v_mul_f32 v{xf+r}, v{xlo[s]+r}, v{Sreg(s,0)+r}")
                    vop(e1, dl, f"v_mul_f32 v{tmp}, v{xhi[s]+r}, v{Sreg(s,1)+r}")
                last = (r == 3 and l == 2)
                vop(e1, dl, f"v_cvt_pk_bf16_f32 v{xf+r}, v{xf+r}, v{tmp}",
                    store=(f"buffer_store_dwordx4 {vr(xf)}, v{vX}, {sr(sO)}, 0 offen offset:{64*s}{cfg.store_mod}" if last else None))
    vreads = [(k, m["rd"]["win"]) for k, m in enumerate(M) if "win" in m["rd"]]
    special = []
    for (k0, w0), (k1, w1) in zip(vreads, vreads[1:]):
        if w0 != w1:
            op = "v_add_u32" if w1 else "v_subrev_u32"
            special.append(dict(e=k0 - D, d=k1 - D - 1, text=f"{op} v{vVA}, {WINB}, v{vVA}"))

    bars = []
    k = 14 - D
    while k < 91: bars.append(k); k += 14
    k = bars[-1] + cfg.BAR_B
    cstart = idx[("G2", 2, 0, 0, 0)]
    while k < N - 20:
        bars.append(k); k += cfg.BAR_B if k < cstart - 30 else 16
    first_use, last_use = {}, {}
    for k, m in enumerate(M):
        for g in m["needs"]:
            first_use.setdefault(g, k); last_use[g] = k
    order = sorted(groups, key=lambda g: first_use[g])
    overlap = lambda a, b: any(x[0] < y[1] and y[0] < x[1] for x in groups[a]["lds"] for y in groups[b]["lds"])
    for i, g in enumerate(order):
        preds = [h for h in order[:i] if overlap(g, h)]
        fa = max([last_use[h] for h in preds], default=None)
        if fa is None: groups[g]["rel"] = None
        else: groups[g]["rel"] = min(b for b in bars if b >= fa)
        cand = [b for b in bars if b <= first_use[g] - D]
        groups[g]["wait"] = max(cand) if cand else -1
    pro_groups = [g for g in order if groups[g]["rel"] is None]
    main_groups = [g for g in order if groups[g]["rel"] is not None]
    used = set(groups[g]["rel"] for g in main_groups) | set(groups[g]["wait"] for g in order)
    bars = [b for b in bars if b in used]

    slotV = [[] for _ in range(N + 1)]
    slotMem = [[] for _ in range(N + 1)]
    cap = [1 if k + D < N else 2 for k in range(N)] + [10**6]
    dma_slot = {}
    scal = [None] * N
    for b in bars: scal[b] = "s_barrier"; scal[b - 1] = "VMWAIT"
    pend = list(main_groups)
    k = 2
    while pend:
        ok = scal[k] is None and scal[k - 1] is None and scal[k - 2] is None
        rdy = [g for g in pend if groups[g]["rel"] + 2 <= k]
        if ok and rdy:
            g = min(rdy, key=lambda g: first_use[g])
            pend.remove(g)
            dma_slot[g] = k
            scal[k - 1] = ("m0", g); scal[k] = ("soff", g)
            slotMem[k].append(("dma", g)); cap[k] -= 1
            k += cfg.DMA_GAP
        else: k += 1
    if cfg.verbose:
        for g in main_groups: print(g, "rel", groups[g]["rel"], "slot", dma_slot[g], "wait", groups[g]["wait"], "first", first_use[g], "lat", groups[g]["wait"] - 1 - dma_slot[g])
    for sp in special:
        slotV[sp["e"]].append(sp["text"]); cap[sp["e"]] -= 1
    qs = [[v for v in V if v.get("prio", 1) == pr] for pr in (0, 1)]
    for q in qs:
        for i in range(len(q) - 2, -1, -1): q[i]["d"] = min(q[i]["d"], q[i + 1]["d"])
    ptr = [0, 0]
    over = 0; holes = 0
    for k in range(N + 1):
        for qi, q in enumerate(qs):
            while ptr[qi] < len(q):
                v = q[ptr[qi]]
                if v["e"] > k and k < N:
                    assert v["d"] > k or v["d"] >= N - 1, (v, k)
                    break
                force = v["d"] <= k
                if not force and cap[k] <= 0:
                    d = v["d"]
                    cnt = sum(1 for w in q[ptr[qi]:ptr[qi] + 60] if w["d"] <= d)
                    if cnt > 2 * (d - k): force = True
                    if cap[k] <= -2 and v["d"] > k: force = False
                if cap[k] > 0 or force:
                    slotV[k].append(v["text"]); cap[k] -= 1; ptr[qi] += 1
                    if v.get("store"):
                        kk = min(k + 1, N)
                        slotMem[kk].append(("store", v["store"])); cap[kk] -= 1
                else: break
        if k < N:
            if cap[k] < 0: over += -cap[k]
            if cap[k] > 0: holes += cap[k]
    info = dict(over=over, holes=holes, tail=len(slotV[N]), bars=bars)

    pro = ["PF"]
    xq = [("X", s) for s in range(13)]
    if cfg.order == "default":
        gl = list(pro_groups)
        def take(pred):
            for g in [g for g in gl if pred(g)]: pro.append(g); gl.remove(g)
        take(lambda g: g[0] == "R" and g[1] == 0)
        take(lambda g: g[0] == "V" and g[1] == 0)
        pro += xq[0:4]
        take(lambda g: g[0] == "V" and g[1] == 1)
        pro += xq[4:8]
        take(lambda g: g[0] == "V" and g[1] == 2)
        pro += xq[8:13]
        take(lambda g: g[0] == "V")
        take(lambda g: g[0] == "U" and g[1] < 4)
        pro += [("B", s) for s in range(13)]
        take(lambda g: True)
    elif cfg.order == "xfirst":
        pro += xq
        gl = list(pro_groups)
        pro += [g for g in gl if g[0] == "V" or (g[0] == "R" and g[1] == 0)]
        pro += [("B", s) for s in range(13)]
        pro += [g for g in gl if not (g[0] == "V" or (g[0] == "R" and g[1] == 0))]
    elif cfg.order == "xlast":
        gl = list(pro_groups)
        pro += [g for g in gl if g[0] == "V" or (g[0] == "R" and g[1] == 0)]
        pro += [("B", s) for s in range(13)]
        pro += [g for g in gl if not (g[0] == "V" or (g[0] == "R" and g[1] == 0))]
        pro += xq
    info["npro"] = len(pro)
    vm_order = list(pro)
    vm_pos = {g: i for i, g in enumerate(pro)}

    L = []
    A = L.append
    def stamp(i):
        if cfg.stamps or cfg.spin is not None: A(f"{'s_memrealtime' if cfg.spinrt else 's_memtime'} s[{60+2*i}:{61+2*i}]")
    def emit_m0(g):
        m0 = groups[g]["m0"]
        return f"s_add_u32 m0, s{m0[1]}, {m0[2]}" if m0[0] == "add" else f"s_mov_b32 m0, s{m0[1]}"
    def emit_soff(g): return f"s_mov_b32 s{sOFF}, {groups[g]['soff']}"
    def emit_dma(g): return f"buffer_load_dwordx4 v{groups[g]['voff']}, {sr(groups[g]['srd'])}, s{sOFF} offen lds"

    stamp(0)
    A("s_cmp_ge_u32 s2, 256"); A("s_cbranch_scc1 L_end")
    A(f"s_load_dwordx2 {sr(sX,2)}, s[0:1], 0")
    A(f"s_load_dwordx2 {sr(sU,2)}, s[0:1], 8")
    A(f"s_load_dwordx2 {sr(sV,2)}, s[0:1], 16")
    A(f"s_load_dwordx2 {sr(sB,2)}, s[0:1], 24")
    A(f"s_load_dwordx2 {sr(sO,2)}, s[0:1], 32")
    if cfg.stamps: A("s_load_dwordx2 s[56:57], s[0:1], 48")
    A("v_lshrrev_b32 v6, 6, v0")
    A("v_and_b32 v1, 63, v0")
    A(f"v_readfirstlane_b32 s{sW}, v6")
    A("v_and_b32 v2, 15, v0")
    A("v_bfe_u32 v3, v0, 4, 2")
    A("v_bfe_u32 v4, v0, 2, 2")
    A("v_and_b32 v5, 3, v0")
    A(f"v_lshlrev_b32 v{vDU}, 4, v0")
    for b, n in ((sX, 13631488), (sU, 259584), (sV, 259584), (sB, 2496), (sO, 13631488), (sPF, 259584)):
        A(f"s_mov_b32 s{b+2}, {n}"); A(f"s_mov_b32 s{b+3}, 0x00020000")
    A(f"s_mul_i32 s{sW1056}, s{sW}, 1056")
    A(f"s_lshl_b32 s{sW1024}, s{sW}, 10")
    A("v_bfe_u32 v6, v0, 2, 3")
    A(f"v_mul_u32_u24 v{vDV}, 832, v6")
    A("v_bfe_u32 v7, v0, 5, 1")
    A(f"v_lshl_add_u32 v{vDV}, v7, 6, v{vDV}")
    A(f"v_lshl_add_u32 v{vDV}, v5, 4, v{vDV}")
    A(f"s_mul_i32 s3, s{sW}, 6656")
    A(f"v_add_u32 v{vDV}, s3, v{vDV}")
    A("s_lshl_b32 s3, s2, 6"); A(f"s_lshl_b32 s4, s{sW}, 4"); A("s_add_u32 s3, s3, s4")
    A("v_add_u32 v8, s3, v2")
    A(f"v_mul_u32_u24 v{vX}, 832, v8")
    A(f"v_lshl_add_u32 v{vX}, v3, 4, v{vX}")
    A("s_bfe_u32 s3, s2, 0x50003"); A("s_lshl_b32 s3, s3, 1"); A(f"s_and_b32 s4, s{sW}, 1"); A("s_add_u32 s3, s3, s4"); A("s_lshl_b32 s3, s3, 12")
    A("v_lshlrev_b32 v9, 6, v1"); A("v_add_u32 v9, s3, v9")
    A(f"v_mul_u32_u24 v{vSP}, {LAYER - 832}, v7")
    A(f"v_add_u32 v{vSP}, v{vSP}, v{vDV}")
    A("v_mul_u32_u24 v10, 832, v3"); A("v_lshl_add_u32 v10, v2, 2, v10")
    A(f"s_cmp_lt_u32 s{sW}, 2")
    A("s_waitcnt lgkmcnt(0)")
    stamp(1)
    A(f"s_cselect_b32 s{sPF}, s{sU}, s{sV}"); A(f"s_cselect_b32 s{sPF+1}, s{sU+1}, s{sV+1}")
    pro2 = list(pro)
    if cfg.xwait: pro2.insert(pro2.index(("X", 12)) + 1, ("XW",))
    for g in pro2:
        if g == "PF" and cfg.codepf:
            A("s_getpc_b64 s[80:81]"); A("s_and_b32 s80, s80, 0xffffff00"); A("s_and_b32 s81, s81, 0xffff"); A("s_mov_b32 s82, 18688"); A("s_mov_b32 s83, 0x00020000")
            A("v_lshlrev_b32 v11, 7, v0")
            A(f"buffer_load_dword v{TMP+1}, v11, s[80:83], 0 offen")
        if g == "PF": A(f"buffer_load_dword v{TMP}, v9, {sr(sPF)}, 0 offen")
        elif g[0] == "X": A(f"buffer_load_dwordx4 {vr(xhi[g[1]])}, v{vX}, {sr(sX)}, 0 offen offset:{64*g[1]}{cfg.x_mod}")
        elif g[0] == "XW": A("s_waitcnt vmcnt(0)"); stamp(2)
        elif g[0] == "B": A(f"buffer_load_dword a{A_UR+6*g[1]+2}, v10, {sr(sB)}, 0 offen offset:{64*g[1]}")
        else:
            A(emit_m0(g)); A(emit_soff(g)); A(emit_dma(g))
    if not cfg.xwait: stamp(2)
    A(f"v_mul_u32_u24 v{vVA}, 1056, v4"); A(f"v_lshl_add_u32 v{vVA}, v5, 6, v{vVA}"); A(f"v_lshl_add_u32 v{vVA}, v3, 4, v{vVA}")
    A("v_mul_u32_u24 v6, 416, v2")
    A(f"v_add_u32 v6, {WINB}, v6")
    A(f"v_lshl_add_u32 v{vUA}, v3, 4, v6")
    A("v_and_b32 v7, 1, v3"); A(f"v_lshl_add_u32 v{vU64}, v7, 3, v6"); A(f"v_add_u32 v{vU64}, 192, v{vU64}")
    A("v_lshrrev_b32 v6, 1, v4"); A("v_xor_b32 v6, v6, v4"); A("v_and_b32 v6, 1, v6"); A("v_lshl_add_u32 v6, v6, 2, v5")
    A(f"v_mul_u32_u24 v{vVR}, 832, v6"); A(f"v_lshl_add_u32 v{vVR}, v3, 4, v{vVR}"); A(f"v_add_u32 v{vVR}, {VREM}, v{vVR}")
    A(f"s_mov_b32 s{sMLO}, -1"); A(f"s_mov_b32 s{sMLO+1}, 0")
    A(f"s_mov_b32 s{sML[0]}, 0xffff"); A(f"s_mov_b32 s{sML[0]+1}, 0")
    A(f"s_mov_b32 s{sML[1]}, 0xffff0000"); A(f"s_mov_b32 s{sML[1]+1}, 0")
    A(f"s_mov_b32 s{sML[2]}, 0"); A(f"s_mov_b32 s{sML[2]+1}, 0xffff")
    A(f"s_mov_b32 s{sMASK}, 0xffff0000")
    for t, sreg in sWRAP.items():
        p0 = (4 * t) % 65
        A(f"s_add_u32 s{sreg}, s{sW}, {p0}"); A(f"s_cmp_ge_u32 s{sreg}, 65"); A(f"s_cselect_b32 s3, 65, 0")
        A(f"s_sub_u32 s{sreg}, s{sreg}, s3"); A(f"s_lshl_b32 s{sreg}, s{sreg}, 10"); A(f"s_add_u32 s{sreg}, s{sreg}, {WINB}")
    for s in range(13): A(f"v_accvgpr_write_b32 a{A_UR+6*s+3}, 0")
    A(f"v_mov_b32 v{HR+1}, 0"); A(f"v_mov_b32 v{HR+5}, 0")
    A(f"v_cndmask_b32 v{HR}, 0, 1.0, {sr(sML[0],2)}"); A(f"v_lshrrev_b32 v{HR+4}, 16, v{HR}")
    for r in range(104): A(f"v_mov_b32 v{S0+r}, 1.0")
    vm_done = -1
    def vm_wait_for(items):
        nonlocal vm_done
        hi = max([vm_pos[g] for g in items], default=-1)
        if hi <= vm_done: return None
        vm_done = hi
        n = len(vm_order) - 1 - hi
        return min(n, 63) if n <= 63 else None
    n = vm_wait_for([g for g in order if groups[g]["wait"] == -1])
    A(f"s_waitcnt vmcnt({n})"); A("s_barrier")
    stamp(3)
    def emit_read(k):
        rd = M[k]["rd"]
        return f"{rd['op']} {rd['dst']}, v{rd['addr']} offset:{rd['off']}"
    for k in range(D): A(emit_read(k))
    lg_done = -1
    def mfma_vm_needs(k):
        t = M[k]["tag"]
        if t[0] == "G1" and t[1] == 0: return [("X", t[2])]
        if t[0] == "G2" and t[1] == 0 and t[4] == 3: return [("B", t[2])]
        return []
    def wait_instr(upto, issued, extra_vm=()):
        nonlocal lg_done
        upto = min(upto, N - 1)
        parts = []
        need = list(extra_vm)
        for kk in range(0, upto + 1) if upto < 300 else []: need += mfma_vm_needs(kk)
        n = vm_wait_for(need)
        if n is not None: parts.append(f"vmcnt({n})")
        if upto > lg_done:
            parts.append(f"lgkmcnt({issued - 1 - upto})"); lg_done = upto
        return ("s_waitcnt " + " ".join(parts)) if parts else None
    if cfg.stamps or cfg.spin is not None: A("s_waitcnt lgkmcnt(0)"); lg_done = D - 1
    def is_free(k): return scal[k] is None or scal[k] == "VMWAIT"
    def next_free(k):
        k += 1
        while k < N and not is_free(k): k += 1
        return k
    w = wait_instr(next_free(-1), D)
    if w: A(w)
    stamp(4)
    minlat = 10**9
    for k in range(N):
        m = M[k]
        C = "0" if m["czero"] else vr(m["acc"])
        A(f"v_mfma_f32_16x16x32_bf16 {vr(m['acc'])}, {m['A']}, {vr(m['B'])}, {C}")
        issued = min(k + D, N)
        sc = scal[k]
        if is_free(k):
            ex = []
            if sc == "VMWAIT":
                ex = [g for g in order if groups[g]["wait"] == k + 1]
                for g in ex:
                    if g in dma_slot: minlat = min(minlat, k - dma_slot[g])
            w = wait_instr(next_free(k), issued, ex)
            if w: A(w)
        elif sc == "s_barrier": A(sc)
        elif sc[0] == "m0": A(emit_m0(sc[1]))
        elif sc[0] == "soff": A(emit_soff(sc[1]))
        if k + D < N: A(emit_read(k + D))
        for kind, x in slotMem[k]:
            if kind == "dma":
                A(emit_dma(x)); vm_pos[x] = len(vm_order); vm_order.append(x)
            else:
                A(x); vm_order.append("st")
        for t in slotV[k]: A(t)
    info["minlat"] = minlat
    if slotV[N]:
        A("s_nop 7")
        for t in slotV[N]: A(t)
    for kind, x in slotMem[N]: A(x)
    if cfg.stamps:
        stamp(5)
        A("s_waitcnt vmcnt(0)")
        stamp(6)
        A("s_memrealtime s[74:75]")
        A("s_waitcnt lgkmcnt(0)")
        A("s_mov_b32 s58, 0x10000000"); A("s_mov_b32 s59, 0x00020000")
        A("s_lshl_b32 s3, s2, 2"); A(f"s_add_u32 s3, s3, s{sW}"); A("s_lshl_b32 s3, s3, 5"); A("s_add_u32 s3, s3, 0x400000")
        A("v_mov_b32 v1, s3")
        for i in range(1, 7):
            A(f"s_sub_u32 s4, s{60+2*i}, s60"); A("v_mov_b32 v2, s4")
            A(f"buffer_store_dword v2, v1, s[56:59], 0 offen offset:{4*(i-1)}")
        A("v_mov_b32 v2, s74"); A("buffer_store_dword v2, v1, s[56:59], 0 offen offset:24")
        A("v_mov_b32 v2, s60"); A("buffer_store_dword v2, v1, s[56:59], 0 offen offset:28")
    if cfg.spin is not None:
        stamp(5)
        A("s_waitcnt vmcnt(0)")
        stamp(6)
        A("s_waitcnt lgkmcnt(0)")
        if cfg.spinwg >= 0: A(f"s_cmp_lg_u32 s2, {cfg.spinwg}"); A("s_cbranch_scc1 L_end")
        A(f"s_sub_u32 s4, s{60+2*cfg.spin}, s{60+2*cfg.spinbase}"); A("s_mul_i32 s4, s4, 10"); A(f"s_add_u32 s4, s4, {cfg.spinfix}"); A(f"s_min_u32 s4, s4, {100000 if cfg.spinrt else 2000000}")
        A("L_spin:")
        A(f"{'s_memrealtime' if cfg.spinrt else 's_memtime'} s[76:77]"); A("s_waitcnt lgkmcnt(0)"); A(f"s_sub_u32 s5, s76, s{60 if cfg.spinfix else 72}"); A("s_cmp_lt_u32 s5, s4"); A("s_cbranch_scc1 L_spin")
    A("L_end:")
    A("s_endpgm")
    check_hazards(L)
    return single("\n".join("    " + x if not x.endswith(":") else x for x in L), 256, lds=LDS_BYTES, vgpr=512, accum=256), info

import re
def regs_of(tok):
    tok = tok.strip()
    m = re.fullmatch(r"([va])\[(\d+):(\d+)\]", tok)
    if m: return {(m.group(1), i) for i in range(int(m.group(2)), int(m.group(3)) + 1)}
    m = re.fullmatch(r"([va])(\d+)", tok)
    if m: return {(m.group(1), int(m.group(2)))}
    return set()
def check_hazards(L):
    ins = []
    for x in L:
        if x.endswith(":"): continue
        op, _, rest = x.partition(" ")
        toks = [t.split()[0] if t.split() else "" for t in rest.split(",")]
        ins.append((op, toks, x))
    for i, (op, toks, x) in enumerate(ins):
        if op.startswith("v_mfma"):
            dst = regs_of(toks[0]); t = 0; lastM = 0
            for j in range(i + 1, min(i + 12, len(ins))):
                o2, t2, x2 = ins[j]
                t += 4
                prev = ins[j - 1]
                if prev[0] == "s_nop": t += 4 * int(prev[1][0])
                if o2.startswith("v_mfma"):
                    t = max(t, lastM + 16); lastM = t
                    if dst & (regs_of(t2[1]) | regs_of(t2[2])) and t < 36: raise Exception(f"mfma->AB hazard {x} / {x2}")
                elif o2.startswith(("v_", "ds_", "buffer_")):
                    allr = set().union(*[regs_of(z) for z in t2])
                    if dst & allr and t < 36: raise Exception(f"mfma->valu hazard {x} / {x2} t={t}")
                if t >= 36: break
        elif op.startswith("v_"):
            dst = regs_of(toks[0])
            for j in range(i + 1, min(i + 3, len(ins))):
                o2, t2, x2 = ins[j]
                if o2.startswith("v_mfma") and dst & set().union(*[regs_of(z) for z in t2[1:]]): raise Exception(f"valu->mfma hazard {x} / {x2}")
                if o2 == "s_nop": break

if __name__ == "__main__":
    kw = {}
    out = sys.argv[1]
    for a in sys.argv[2:]:
        k, v = a.split("=", 1)
        kw[k] = eval(v)
    txt, info = generate(Cfg(**kw))
    open(out, "w").write(txt)
    print(info)
```
